```python
import torch

def _softmax(x, axis=-1):
    return torch.softmax(x, dim=axis)
def _gelu(x):
    return torch.nn.functional.gelu(x, approximate="tanh")
def _silu(x):
    return torch.nn.functional.silu(x)
def _sigmoid(x):
    return torch.sigmoid(x)
def _layernorm(x, axis=-1, eps=1e-5):
    m = x.mean(dim=axis, keepdim=True)
    v = x.var(dim=axis, keepdim=True, unbiased=False)
    return (x - m) / torch.sqrt(v + eps)
def _scatter_add(tgt, idx, src, axis=0):
    return tgt.clone().index_add_(axis, idx, src)
def _segment_sum(src, seg, n):
    out = torch.zeros((n,) + src.shape[1:], dtype=src.dtype)
    return out.index_add_(0, seg, src)
def _pad(x, pw):
    flat = tuple(v for pair in reversed(pw) for v in pair)
    return torch.nn.functional.pad(x, flat)

kernel_name = 'gated_mix__sliding_block__dense_activation_relu__prompt'

def setup_inputs():

    _w = (lambda a: (lambda t: t.to(torch.bfloat16) if t.is_floating_point() else t)(torch.as_tensor(a)))
    def _A_setup():
        B, S, D = 1, 2048, 640
        return {
            "x": _w((lambda *s: torch.randn(*s, dtype=torch.bfloat16) * 0.05)(B, S, D)),
            "wqkv": _w((lambda *s: torch.randn(*s, dtype=torch.bfloat16) * 1.6)(D, 3 * D)),
            "wo": _w((lambda *s: torch.randn(*s, dtype=torch.bfloat16) * 0.05)(D, D)),
        }
    _A_in = _A_setup()

    def _B_setup():
        B, S, D, Dff = 1, 2048, 640, 1536
        return {
            "x": _w((lambda *s: torch.randn(*s, dtype=torch.bfloat16) * 0.05)(B, S, D)),
            "w1": _w((lambda *s: torch.randn(*s, dtype=torch.bfloat16) * 0.2)(D, Dff)),
            "w2": _w((lambda *s: torch.randn(*s, dtype=torch.bfloat16) * 0.2)(Dff, D)),
        }
    _B_in = _B_setup()

    return {
        "A_x": _A_in["x"],
        "A_wqkv": _A_in["wqkv"],
        "A_wo": _A_in["wo"],
        "B_x": _B_in["x"],
        "B_w1": _B_in["w1"],
        "B_w2": _B_in["w2"],
        "gate_w": _w((lambda *s: torch.randn(*s, dtype=torch.bfloat16) * 0.05)(640) * 16.0),
    }

def reference(A_x, A_wqkv, A_wo, B_x, B_w1, B_w2, gate_w):
    def _A_ref(x, wqkv, wo):
        B, S, D = x.shape
        H = 32; Dh = D // H; W = 256
        qkv = (lambda x, *d: x.permute(*d))((x @ wqkv).reshape(B, S, 3, H, Dh), 2, 0, 3, 1, 4)
        q, k, v = qkv[0], qkv[1], qkv[2]
        scores = torch.einsum("bhqd,bhkd->bhqk", q, k) * (Dh ** -0.5)
        idx = torch.arange(S)
        mask = (idx[:, None] - idx[None, :] >= 0) & (idx[:, None] - idx[None, :] < W)
        scores = torch.where(mask[None, None], scores, -1e9)
        p = _softmax(scores, axis=-1)
        o = torch.einsum("bhqk,bhkd->bhqd", p, v)
        return (lambda x, *d: x.permute(*d))(o, 0, 2, 1, 3).reshape(B, S, D) @ wo

    def _B_ref(x, w1, w2):
        h = torch.einsum("bsd,df->bsf", x, w1)
        zero = torch.zeros_like(h)
        h = torch.maximum(h, zero)
        return torch.einsum("bsf,fd->bsd", h, w2)

    x = A_x
    g = _sigmoid((x * gate_w).sum(-1, keepdims=True))
    a = _A_ref(x, A_wqkv, A_wo)
    b = _B_ref(x, B_w1, B_w2)
    return g * a + (1 - g) * b
```

```python
import re

REG_RE = re.compile(r'^(-|abs\()?([vsa])(\d+)\)?$')
RNG_RE = re.compile(r'^([vsa])\[(\d+):(\d+)\]$')

def regs_of(tok):
    tok = tok.strip()
    if tok.startswith('-'): tok = tok[1:]
    if tok.startswith('abs(') and tok.endswith(')'): tok = tok[4:-1]
    m = RNG_RE.match(tok)
    if m:
        return [(m.group(1), i) for i in range(int(m.group(2)), int(m.group(3)) + 1)]
    m = re.match(r'^([vsa])(\d+)$', tok)
    if m: return [(m.group(1), int(m.group(2)))]
    if tok == 'vcc': return [('s', 106), ('s', 107)]
    if tok == 'vcc_lo': return [('s', 106)]
    if tok == 'vcc_hi': return [('s', 107)]
    if tok == 'exec': return [('s', 126), ('s', 127)]
    if tok == 'm0': return [('s', 124)]
    return []

TRANS = ('v_exp_f32', 'v_log_f32', 'v_rcp_f32', 'v_rsq_f32', 'v_sqrt_f32', 'v_sin_f32', 'v_cos_f32', 'v_rcp_iflag_f32')

class Ins:
    __slots__ = ('text', 'mn', 'ops', 'mods', 'wr', 'rd', 'kind', 'passes', 'srcA', 'srcB', 'srcC', 'label', 'nws', 'comment')
    def __init__(self, text):
        self.text = text
        self.label = None
        self.wr = []; self.rd = []; self.kind = 'other'; self.passes = 0
        self.srcA = self.srcB = self.srcC = []
        self.nws = 1
        t = text.split(';')[0].strip()
        if t.endswith(':'):
            self.label = t[:-1]; self.kind = 'label'; self.nws = 0; self.mn = ''; return
        if t.startswith('.') or t == '':
            self.kind = 'directive'; self.nws = 0; self.mn = ''; return
        parts = t.split(None, 1)
        self.mn = mn = parts[0]
        rest = parts[1] if len(parts) > 1 else ''
        ops = [o.strip() for o in rest.split(',')] if rest else []
        mods = []
        if ops:
            sp = ops[-1].split()
            ops[-1] = sp[0] if sp else ''
            mods = sp[1:]
        self.ops = ops; self.mods = mods
        R = regs_of
        if mn == 's_nop':
            self.kind = 'nop'; self.nws = int(ops[0], 0) + 1
        elif mn.startswith('v_mfma'):
            self.kind = 'mfma'
            self.passes = 8 if '32x32' in mn else 4
            self.wr = R(ops[0]); self.srcA = R(ops[1]); self.srcB = R(ops[2]); self.srcC = R(ops[3])
            self.rd = self.srcA + self.srcB + self.srcC
        elif mn.startswith('v_cmp'):
            self.kind = 'valu'; self.wr = R(ops[0]); self.rd = sum((R(o) for o in ops[1:]), [])
        elif mn in ('v_readfirstlane_b32', 'v_readlane_b32'):
            self.kind = 'valu'; self.wr = R(ops[0]); self.rd = sum((R(o) for o in ops[1:]), [])
        elif mn.startswith('v_permlane') and 'swap' in mn:
            self.kind = 'valu'; self.wr = R(ops[0]) + R(ops[1]); self.rd = R(ops[0]) + R(ops[1])
        elif mn == 'v_swap_b32':
            self.kind = 'valu'; self.wr = R(ops[0]) + R(ops[1]); self.rd = R(ops[0]) + R(ops[1])
        elif mn in ('v_add_co_u32', 'v_sub_co_u32', 'v_addc_co_u32', 'v_subb_co_u32'):
            self.kind = 'valu'; self.wr = R(ops[0]) + R(ops[1]); self.rd = sum((R(o) for o in ops[2:]), [])
        elif mn.startswith('v_'):
            self.kind = 'valu'; self.wr = R(ops[0]); self.rd = sum((R(o) for o in ops[1:]), [])
            if mn.startswith(('v_fmac', 'v_dot2c', 'v_pk_fmac', 'v_mac')): self.rd += R(ops[0])
            if mn.startswith('v_cndmask') and len(ops) == 3: self.rd += R('vcc')
        elif mn.startswith('ds_read') or mn.startswith('ds_bpermute') or mn.startswith('ds_swizzle') or mn.startswith('ds_permute'):
            self.kind = 'ds'; self.wr = R(ops[0]); self.rd = sum((R(o) for o in ops[1:]), [])
        elif mn.startswith('ds_write'):
            self.kind = 'ds'; self.rd = sum((R(o) for o in ops), [])
        elif mn.startswith('buffer_load') or mn.startswith('global_load'):
            self.kind = 'vmem'
            if 'lds' in mods or '_lds_' in mn:
                self.rd = sum((R(o) for o in ops), []) + R('m0'); self.kind = 'vmem_lds'
            else:
                self.wr = R(ops[0]); self.rd = sum((R(o) for o in ops[1:]), [])
        elif mn.startswith('buffer_store') or mn.startswith('global_store'):
            self.kind = 'vmem_st'; self.rd = sum((R(o) for o in ops), [])
        elif mn.startswith('buffer_atomic') or mn.startswith('global_atomic'):
            self.kind = 'vmem_st'; self.rd = sum((R(o) for o in ops), [])
            if 'sc0' in mods: self.wr = R(ops[0])
        elif mn.startswith('buffer_wbl2') or mn.startswith('buffer_inv'):
            self.kind = 'vmem_misc'
        elif mn.startswith('s_load') or mn.startswith('s_buffer_load') or mn in ('s_memtime', 's_memrealtime'):
            self.kind = 'smem'; self.wr = R(ops[0]); self.rd = sum((R(o) for o in ops[1:]), [])
        elif mn.startswith('s_cmp') or mn.startswith('s_bitcmp'):
            self.kind = 'salu'; self.rd = sum((R(o) for o in ops), [])
        elif mn.startswith('s_cbranch') or mn in ('s_branch', 's_endpgm', 's_barrier', 's_waitcnt', 's_setprio', 's_sleep'):
            self.kind = 'ctl'
        elif mn.endswith('saveexec_b64'):
            self.kind = 'salu'; self.wr = R(ops[0]) + R('exec'); self.rd = R(ops[1]) + R('exec')
        elif mn.startswith('s_'):
            self.kind = 'salu'; self.wr = R(ops[0]); self.rd = sum((R(o) for o in ops[1:]), [])
        else:
            raise ValueError("unknown instr: " + text)

def need_ws(p, c):
    n = 0
    pw = set(p.wr)
    if p.kind == 'valu':
        pv = {r for r in pw if r[0] in 'va'}
        ps = {r for r in pw if r[0] == 's'}
        if c.kind == 'mfma' and pv & set(c.rd): n = max(n, 2)
        if ps:
            if c.kind == 'valu' and ps & set(c.rd):
                n = max(n, 4 if c.mn in ('v_readlane_b32', 'v_writelane_b32') else 2)
            if c.kind == 'mfma' and ps & set(c.rd): n = max(n, 2)
            if c.kind in ('vmem', 'vmem_lds', 'vmem_st') and ps & set(c.rd): n = max(n, 5)
            if c.kind in ('salu', 'smem') and ps & set(c.rd): n = max(n, 1)
            if ('s', 126) in ps or ('s', 127) in ps:
                if c.kind == 'mfma': n = max(n, 4)
        if pv:
            if c.mn in ('v_readlane_b32', 'v_readfirstlane_b32') and pv & set(c.rd): n = max(n, 1)
            if c.mn.startswith('v_permlane') and pv & set(c.rd): n = max(n, 2)
            if c.kind == 'valu' and ('dpp' in c.text or 'row_' in c.text or 'quad_perm' in c.text) and pv & set(c.rd): n = max(n, 2)
            if p.mn in TRANS and c.kind in ('valu', 'mfma', 'vmem_st', 'ds') and c.mn not in TRANS and pv & set(c.rd): n = max(n, 1)
            if p.mn in TRANS and c.mn in TRANS and pv & set(c.rd): n = max(n, 1)
    if p.kind == 'mfma':
        d = set(p.wr)
        big = 12 if p.passes == 8 else 8
        if c.kind == 'mfma':
            if d & (set(c.srcA) | set(c.srcB)): n = max(n, big)
            if d & set(c.srcC):
                if not (list(p.wr) == list(c.srcC) and p.passes == c.passes):
                    n = max(n, 10 if p.passes == 8 else 6)
            elif d & set(c.wr):
                n = max(n, big)
        elif c.kind in ('valu', 'ds', 'vmem', 'vmem_st', 'vmem_lds'):
            if d & (set(c.rd) | set(c.wr)): n = max(n, big)
        if c.kind == 'valu' and set(p.srcC) & set(c.wr): n = max(n, 7 if p.passes == 8 else 3)
    if p.kind == 'vmem_st' and ('x4' in p.mn or 'x3' in p.mn):
        data = set(regs_of(p.ops[0])) if p.mn.startswith('buffer') else set(regs_of(p.ops[1]))
        if data & set(c.wr): n = max(n, 2 if c.kind == 'valu' else 1)
    if p.kind == 'ds' and p.mn.startswith('ds_write') and ('b128' in p.mn or 'b96' in p.mn):
        data = set(regs_of(p.ops[1]))
        if data & set(c.wr): n = max(n, 2 if c.kind == 'valu' else 1)
    if p.kind == 'salu' and ('s', 124) in pw and c.kind == 'vmem_lds': n = max(n, 1)
    if p.kind == 'salu' and (('s',126) in pw or ('s',127) in pw) and c.kind in ('valu',) and (c.mn.startswith('v_readlane') or c.mn.startswith('v_readfirstlane') or c.mn.startswith('v_permlane')):
        n = max(n, 1)
    return n

class Asm:
    def __init__(self):
        self.ins = []
    def __call__(self, text):
        for line in text.strip('\n').split('\n'):
            line = line.strip()
            if not line or line.startswith(';'):
                continue
            self.ins.append(Ins(line))
    def label(self, name): self.ins.append(Ins(name + ':'))
    def nop(self, n): self.ins.append(Ins('s_nop %d' % n))
    def finalize(self, window=24):
        out = []
        for c in self.ins:
            if c.kind in ('label', 'directive'):
                out.append(c); continue
            dist = 0; need = 0
            for p in reversed(out):
                if p.kind in ('label', 'directive'): continue
                if dist >= window: break
                w = need_ws(p, c)
                if w > dist: need = max(need, w - dist)
                dist += p.nws
            while need > 0:
                k = min(need, 16)
                out.append(Ins('s_nop %d' % (k - 1))); need -= k
            out.append(c)
        self.ins = out
    def text(self):
        o = []
        for i in self.ins:
            if i.kind == 'label' or i.kind == 'directive': o.append(i.text)
            else: o.append('    ' + i.text)
        return '\n'.join(o) + '\n'

def vr(a, n=1):
    return 'v%d' % a if n == 1 else 'v[%d:%d]' % (a, a + n - 1)
def sr(a, n=1):
    return 's%d' % a if n == 1 else 's[%d:%d]' % (a, a + n - 1)
```

```python
import sys, math
from asm import *

KN = "gated_mix__sliding_block__dense_activation_relu__prompt"
QKV_OFF = 0
H_OFF = 0x800000
O_OFF = 0x1000000
G_OFF = 0x1400000
FLAG_OFF = 0x1500000
WS_SIZE = 0x1600000
CQ = math.log2(math.e) / math.sqrt(20.0)

def f32bits(x):
    import struct
    return struct.unpack('<I', struct.pack('<f', x))[0]

S_X, S_WQKV, S_W1, S_W2, S_WO, S_GW, S_OUT, S_WS = 8, 12, 16, 20, 24, 28, 32, 36

class VM:
    def __init__(self): self.ops = []
    def issue(self, tag): self.ops.append(tag)
    def wait_for(self, a, pred):
        last = -1
        for i, t in enumerate(self.ops):
            if pred(t): last = i
        assert last >= 0
        n = len(self.ops) - 1 - last
        assert n <= 63, n
        a('s_waitcnt vmcnt(%d)' % n)

def prologue(a, nwg=256):
    a(f'''
    s_cmp_ge_u32 s2, {nwg}
    s_cbranch_scc1 L_END_{a.name}
    s_load_dwordx4 s[40:43], s[0:1], 0
    s_load_dwordx2 s[44:45], s[0:1], 16
    s_load_dwordx4 s[48:51], s[0:1], 32
    s_load_dwordx4 s[52:55], s[0:1], 48
    s_load_dwordx4 s[56:59], s[0:1], 64
    v_and_b32 v1, 63, v0
    v_lshrrev_b32 v2, 6, v0
    s_nop 0
    v_readfirstlane_b32 s3, v2
    s_waitcnt lgkmcnt(0)
    ''')
    def srd(d, lo, size):
        a(f'''
        s_mov_b32 s{d}, s{lo}
        s_and_b32 s{d+1}, s{lo+1}, 0xffff
        s_mov_b32 s{d+2}, {size}
        s_mov_b32 s{d+3}, 0x00020000
        ''')
    srd(S_X, 40, 2048 * 1280)
    srd(S_WQKV, 42, 640 * 3840)
    srd(S_WO, 44, 640 * 1280)
    srd(S_W1, 48, 640 * 3072)
    srd(S_W2, 50, 1536 * 1280)
    srd(S_GW, 52, 1280)
    srd(S_OUT, 54, 2048 * 1280)
    srd(S_WS, 58, WS_SIZE)

def kernel_wrap(name, body_text, vgpr, sgpr=96):
    return f'''.globl {name}
.p2align 8
.type {name},@function
{name}:
{body_text}
'''

def kd(name, vgpr, sgpr=96):
    return f'''.amdhsa_kernel {name}
  .amdhsa_next_free_vgpr {vgpr}
  .amdhsa_next_free_sgpr {sgpr}
  .amdhsa_accum_offset {vgpr}
  .amdhsa_group_segment_fixed_size 0
  .amdhsa_kernarg_size 80
  .amdhsa_user_sgpr_count 2
  .amdhsa_user_sgpr_kernarg_segment_ptr 1
  .amdhsa_system_sgpr_workgroup_id_x 1
.end_amdhsa_kernel
'''

WA_BASE = 0
WB_BASE = 81920
K1_LDS = WB_BASE + 65536

def gemm1(a, st_flags=''):
    XF = 96; ACC = 64; WF0 = 32; WF1 = 48
    def xf(s, t): return XF + (s * 2 + t) * 4
    def acc(t, nt): return ACC + (t * 4 + nt) * 4
    vm = VM()
    a('''
    s_and_b32 s62, s2, 7
    s_lshr_b32 s63, s2, 3
    s_lshr_b32 s60, s62, 2
    s_lshl_b32 s60, s60, 2
    s_lshr_b32 s64, s63, 3
    s_add_u32 s60, s60, s64
    s_and_b32 s61, s62, 3
    s_lshl_b32 s61, s61, 3
    s_and_b32 s64, s63, 7
    s_add_u32 s61, s61, s64
    ''')
    a('''
    v_and_b32 v2, 15, v1
    v_lshrrev_b32 v3, 4, v1
    ''')
    a('''
    v_mul_u32_u24 v4, 1280, v2
    v_lshl_add_u32 v4, v3, 4, v4
    s_lshl_b32 s65, s60, 8
    s_lshl_b32 s64, s3, 5
    s_add_u32 s65, s65, s64
    s_mul_i32 s65, s65, 1280
    s_add_u32 s66, s65, 20480
    ''')
    a('''
    v_lshrrev_b32 v6, 3, v1
    v_and_b32 v7, 2, v6
    s_and_b32 s64, s3, 1
    s_lshl_b32 s64, s64, 2
    v_or_b32 v7, s64, v7
    v_and_b32 v8, 7, v1
    v_xor_b32 v8, v8, v7
    s_and_b32 s67, s3, 3
    s_lshl_b32 s64, s67, 3
    v_add_u32 v6, s64, v6
    v_mul_u32_u24 v5, 3840, v6
    v_lshl_add_u32 v5, v8, 4, v5
    ''')
    a(f'''
    s_lshr_b32 s64, s3, 2
    s_mul_i32 s68, s64, 122880
    s_mul_i32 s70, s61, 120
    s_add_u32 s68, s68, s70
    s_lshl_b32 s69, s64, 12
    s_lshl_b32 s70, s67, 10
    s_add_u32 s69, s69, s70
    s_add_u32 s69, s69, {WA_BASE}
    ''')
    for kp in range(3):
        a(f'''
        s_add_u32 s64, s3, {2*kp}
        s_mul_i32 s70, s64, 171
        s_lshr_b32 s70, s70, 9
        s_mul_i32 s70, s70, 3
        s_sub_u32 s64, s64, s70
        s_lshl_b32 s64, s64, 6
        v_add_u32 v12, s64, v1
        v_mul_u32_u24 v13, 171, v12
        v_lshrrev_b32 v13, 10, v13
        v_mul_u32_u24 v14, 6, v13
        v_sub_u32 v14, v12, v14
        v_bfe_u32 v15, v13, 2, 2
        v_lshlrev_b32 v15, 3, v15
        v_lshrrev_b32 v16, 4, v13
        v_lshl_add_u32 v15, v16, 2, v15
        v_and_b32 v16, 3, v13
        v_add_u32 v15, v15, v16
        v_mul_u32_u24 v{9+kp}, 3072, v15
        v_lshl_add_u32 v{9+kp}, v14, 4, v{9+kp}
        ''')
    a('''
    v_bfe_u32 v16, v1, 2, 2
    v_and_b32 v17, 3, v1
    v_lshrrev_b32 v18, 1, v16
    v_and_b32 v19, 1, v3
    v_lshl_or_b32 v18, v19, 1, v18
    v_lshl_add_u32 v19, v3, 3, v16
    v_lshlrev_b32 v19, 7, v19
    v_lshl_add_u32 v19, v17, 3, v19
    ''')
    for nt in range(4):
        a(f'''
        v_xor_b32 v20, {nt}, v18
        v_lshl_add_u32 v{12+nt}, v20, 5, v19
        ''')
    a(f'''
    v_lshl_add_u32 v20, v3, 2, v16
    v_mul_u32_u24 v21, 96, v20
    v_lshl_add_u32 v21, v17, 3, v21
    v_add_u32 v21, {WB_BASE}, v21
    ''')
    a('''
    v_lshlrev_b32 v22, 4, v1
    s_lshl_b32 s71, s60, 8
    s_lshl_b32 s64, s61, 3
    s_add_u32 s71, s71, s64
    s_add_u32 s71, s71, s3
    s_mul_i32 s72, s71, 1280
    ''')
    for i in range(32): a(f'v_mov_b32 v{ACC+i}, 0')

    def issue_stage(sg):
        a(f's_mov_b32 m0, s69')
        a(f'buffer_load_dwordx4 v5, s[{S_WQKV}:{S_WQKV+3}], s68 offen lds'); vm.issue(('A', sg))
        a(f's_add_u32 s68, s68, 245760')
        a(f's_add_u32 s69, s69, 8192')
        for ks in (2*sg, 2*sg+1):
            for t in range(2):
                a(f'buffer_load_dwordx4 v[{xf(ks,t)}:{xf(ks,t)+3}], v4, s[{S_X}:{S_X+3}], s{65+t} offen offset:{64*ks}'); vm.issue(('A', sg))
    def issue_B(i):
        kp = i % 3
        a(f'''
        s_add_u32 s64, s3, {8*i}
        s_mul_i32 s70, s64, 171
        s_lshr_b32 s70, s70, 9
        s_mul_i32 s70, s70, 98304
        s_mul_i32 s73, s61, 96
        s_add_u32 s70, s70, s73
        s_lshl_b32 s64, s64, 10
        s_add_u32 m0, s64, {WB_BASE}
        s_nop 0
        buffer_load_dwordx4 v{9+kp}, s[{S_W1}:{S_W1+3}], s70 offen lds
        '''); vm.issue(('B', i))
    D = 3
    for sg in range(D): issue_stage(sg)
    a(f'buffer_load_dwordx4 v[24:27], v22, s[{S_X}:{S_X+3}], s72 offen'); vm.issue(('G', 0))
    a(f'buffer_load_dwordx4 v[28:31], v22, s[{S_X}:{S_X+3}], s72 offen offset:1024'); vm.issue(('G', 0))
    GW = 128 + 96
    nB = 0
    for sg in range(10):
        vm.wait_for(a, lambda t: t == ('A', sg))
        a('s_barrier')
        if sg + D < 10: issue_stage(sg + D)
        else:
            for _ in range(3):
                if nB < 8: issue_B(nB); nB += 1
        for h, ks in enumerate((2*sg, 2*sg+1)):
            WF = WF0 if h == 0 else WF1
            off = WA_BASE + (ks % 4) * 4096
            for nt in range(4):
                for u in range(2):
                    a(f'ds_read_b64_tr_b16 v[{WF+nt*4+2*u}:{WF+nt*4+2*u+1}], v{12+nt} offset:{off+512*u}')
        for h, ks in enumerate((2*sg, 2*sg+1)):
            WF = WF0 if h == 0 else WF1
            for nt in range(4):
                rem = (8 - 2*(nt+1)) + (8 if h == 0 else 0)
                a(f's_waitcnt lgkmcnt({min(rem,15)})')
                for t in range(2):
                    a(f'v_mfma_f32_16x16x32_bf16 v[{acc(t,nt)}:{acc(t,nt)+3}], v[{WF+nt*4}:{WF+nt*4+3}], v[{xf(ks,t)}:{xf(ks,t)+3}], v[{acc(t,nt)}:{acc(t,nt)+3}]')
        if sg % 2 == 1:
            for nt in range(4): a(f'v_add_u32 v{12+nt}, 16384, v{12+nt}')
    while nB < 8: issue_B(nB); nB += 1
    a(f'buffer_load_dwordx4 v[32:35], v22, s[{S_GW}:{S_GW+3}], 0 offen'); vm.issue(('G', 1))
    a(f'buffer_load_dwordx4 v[36:39], v22, s[{S_GW}:{S_GW+3}], 0 offen offset:1024'); vm.issue(('G', 1))
    for nt in range(4):
        a(f'''
        v_lshlrev_b32 v20, 2, v3
        v_add_u32 v20, {16*nt}, v20
        v_mul_u32_u24 v23, 13, v20
        v_lshrrev_b32 v23, 8, v23
        v_mul_u32_u24 v40, 20, v23
        v_sub_u32 v20, v20, v40
        v_mul_u32_u24 v40, 10240, v23
        v_lshl_add_u32 v40, v20, 1, v40
        s_lshl_b32 s64, s3, 5
        v_add_u32 v41, s64, v2
        v_mul_u32_u24 v41, 40, v41
        v_add_u32 v{12+nt}, v40, v41
        s_mul_i32 s64, s61, 3
        v_add_u32 v23, s64, v23
        v_cmp_gt_u32 vcc, 32, v23
        v_mov_b32 v40, 1.0
        v_mov_b32 v41, {f32bits(CQ):#x}
        v_cndmask_b32 v{16+nt}, v40, v41, vcc
        ''')
    a('s_barrier')
    for t in range(2):
        for nt in range(4):
            A = acc(t, nt)
            for r in range(4): a(f'v_mul_f32 v{A+r}, v{A+r}, v{16+nt}')
            a(f'v_cvt_pk_bf16_f32 v{A}, v{A}, v{A+1}')
            a(f'v_cvt_pk_bf16_f32 v{A+1}, v{A+2}, v{A+3}')
            a(f'ds_write_b64 v{12+nt}, v[{A}:{A+1}] offset:{WA_BASE + 640*t}')
    vm.wait_for(a, lambda t: t[0] == 'G')
    a('v_mov_b32 v40, 0')
    for half in range(2):
        for d in range(4):
            xv = 24 + 4*half + d; gv = 32 + 4*half + d
            a(f'''
            v_lshlrev_b32 v41, 16, v{xv}
            v_lshlrev_b32 v42, 16, v{gv}
            v_fmac_f32 v40, v41, v42
            v_and_b32 v41, 0xffff0000, v{xv}
            v_and_b32 v42, 0xffff0000, v{gv}
            v_fmac_f32 v40, v41, v42
            ''')
    for x in (0x041F, 0x081F, 0x101F, 0x201F, 0x401F):
        a(f'''
        ds_swizzle_b32 v41, v40 offset:{x:#x}
        s_waitcnt lgkmcnt(0)
        v_add_f32 v40, v40, v41
        ''')
    a(f'''
    v_readlane_b32 s64, v40, 32
    v_readlane_b32 s70, v40, 0
    v_mov_b32 v40, s64
    v_add_f32 v40, s70, v40
    v_mul_f32 v40, {f32bits(-math.log2(math.e)):#x}, v40
    v_exp_f32 v40, v40
    v_add_f32 v40, 1.0, v40
    v_rcp_f32 v40, v40
    v_mov_b32 v41, 0
    s_lshl_b32 s64, s71, 2
    s_add_u32 s64, s64, {G_OFF}
    buffer_store_dword v40, v41, s[{S_WS}:{S_WS+3}], s64 offen {st_flags}
    '''); vm.issue(('ST', 'g'))
    a('s_waitcnt lgkmcnt(0)')
    a('s_barrier')
    a(f'''
    s_mul_i32 s64, s61, 3
    s_mul_i32 s64, s64, 81920
    s_mul_i32 s70, s60, 10240
    s_add_u32 s64, s64, s70
    s_add_u32 s64, s64, {QKV_OFF}
    v_lshlrev_b32 v40, 4, v0
    ''')
    for i in range(4):
        a(f'ds_read_b128 v[{64+4*i}:{64+4*i+3}], v40 offset:{WA_BASE + 8192*i}')
    a(f'''
    v_add_u32 v42, 8192, v40
    v_cmp_le_u32 vcc, 128, v0
    v_add_u32 v43, {8192 + 71680}, v40
    v_cndmask_b32 v42, v42, v43, vcc
    v_add_u32 v43, {16384 + 71680}, v40
    v_cmp_le_u32 vcc, 256, v0
    v_add_u32 v44, {16384 + 2*71680}, v40
    v_cndmask_b32 v43, v43, v44, vcc
    v_add_u32 v44, {24576 + 2*71680}, v40
    v_cmp_le_u32 vcc, 384, v0
    v_mov_b32 v45, 0x7fffff00
    v_cndmask_b32 v44, v44, v45, vcc
    ''')
    adr = [40, 42, 43, 44]
    for i in range(4):
        a(f's_waitcnt lgkmcnt({3-i})')
        a(f'buffer_store_dwordx4 v[{64+4*i}:{64+4*i+3}], v{adr[i]}, s[{S_WS}:{S_WS+3}], s64 offen {st_flags}'); vm.issue(('ST', 'qkv'))
    def accB(t, nt): return 80 + (t * 3 + nt) * 4
    def accB(t, nt): return 40 + (t * 3 + nt) * 4
    WB0 = 64 + 16; WB1 = WB0
    WBF = [24, 80]
    for i in range(24): a(f'v_mov_b32 v{40+i}, 0')
    def rdB(ks):
        W = WBF[ks % 2]
        for nt in range(3):
            for u in range(2):
                a(f'ds_read_b64_tr_b16 v[{W+nt*4+2*u}:{W+nt*4+2*u+1}], v21 offset:{ks*3072 + u*1536 + nt*32}')
    rdB(0)
    for ks in range(20):
        if ks + 1 < 20: rdB(ks + 1)
        W = WBF[ks % 2]
        for nt in range(3):
            rem = (6 - 2*(nt+1)) + (6 if ks + 1 < 20 else 0)
            a(f's_waitcnt lgkmcnt({rem})')
            for t in range(2):
                a(f'v_mfma_f32_16x16x32_bf16 v[{accB(t,nt)}:{accB(t,nt)+3}], v[{W+nt*4}:{W+nt*4+3}], v[{xf(ks,t)}:{xf(ks,t)+3}], v[{accB(t,nt)}:{accB(t,nt)+3}]')
    a(f'''
    s_lshl_b32 s64, s60, 3
    s_add_u32 s64, s64, s3
    s_mul_i32 s64, s64, 96
    s_mul_i32 s70, s61, 3
    s_add_u32 s64, s64, s70
    s_lshl_b32 s64, s64, 10
    s_add_u32 s64, s64, {H_OFF}
    ''')
    for nt in range(3):
        D0 = 64 + 4*nt
        for t in range(2):
            A = accB(t, nt)
            for r in range(4): a(f'v_max_f32 v{A+r}, 0, v{A+r}')
            a(f'v_cvt_pk_bf16_f32 v{D0+2*t}, v{A}, v{A+1}')
            a(f'v_cvt_pk_bf16_f32 v{D0+2*t+1}, v{A+2}, v{A+3}')
        a(f'buffer_store_dwordx4 v[{D0}:{D0+3}], v22, s[{S_WS}:{S_WS+3}], s64 offen offset:{1024*nt} {st_flags}'); vm.issue(('ST', 'h'))
    return vm

def build():
    out = []
    out.append(f'''; generated by gen1.py
; @launch kernel=k1_kernel grid=(256,1,1) block=(512,1,1) lds={K1_LDS}
.amdgcn_target "amdgcn-amd-amdhsa--gfx950"
.text
''')
    a = Asm(); a.name = 'k1'
    prologue(a)
    gemm1(a)
    a('s_waitcnt vmcnt(0)')
    a.label('L_END_k1')
    a('s_endpgm')
    a.finalize()
    out.append(kernel_wrap('k1_kernel', a.text(), 256))
    out.append('.section .rodata,"a"\n.p2align 6\n')
    out.append(kd('k1_kernel', 256))
    return ''.join(out)

if __name__ == '__main__':
    open(sys.argv[1], 'w').write(build())
```

```python
from asm import *
from gen1 import *

K2_LDS = 83968 + 1024
OST = 73728

def attention(a, st_flags='', ld_flags=''):
    vm = VM()
    KF = 32; Q0 = 104; Q1 = 108
    SBUF = [112, 128]; SC = 144; NEGM = 160; P = 176; P2 = 184; VFB = [192, 200]; O = 208; M8 = 224
    a('''
    s_and_b32 s62, s2, 7
    s_lshr_b32 s63, s2, 3
    s_lshr_b32 s64, s63, 4
    s_lshl_b32 s60, s62, 1
    s_add_u32 s60, s60, s64
    s_and_b32 s61, s63, 15
    ''')
    for b in range(3):
        a(f'''
        v_add_u32 v5, {64*b}, v1
        v_mul_u32_u24 v6, 171, v5
        v_lshrrev_b32 v6, 9, v6
        v_mul_u32_u24 v7, 3, v6
        v_sub_u32 v7, v5, v7
        v_mul_u32_u24 v{2+b}, 40, v6
        v_lshl_add_u32 v{2+b}, v7, 4, v{2+b}
        ''')
    a(f'''
    s_lshr_b32 s64, s3, 1
    s_and_b32 s65, s3, 1
    s_lshr_b32 s66, s64, 1
    s_and_b32 s67, s64, 1
    s_lshl_b32 s68, s67, 5
    s_add_u32 s68, s68, 32
    s_lshl_b32 s69, s60, 1
    s_add_u32 s68, s68, s69
    s_add_u32 s68, s68, s66
    s_mul_i32 s68, s68, 81920
    s_add_u32 s68, s68, {QKV_OFF}
    s_lshl_b32 s69, s61, 7
    s_sub_i32 s69, s69, 256
    s_mul_i32 s70, s65, 192
    s_add_i32 s69, s69, s70
    s_mul_i32 s71, s64, 18432
    s_mul_i32 s70, s65, 9216
    s_add_u32 s71, s71, s70
    ''')
    for aa in range(3):
        a(f'''
        s_add_i32 s70, s69, {64*aa}
        s_mul_i32 s72, s70, 40
        s_add_u32 s72, s72, s68
        s_cmp_lt_i32 s70, 0
        s_cselect_b32 s72, 0x7ff00000, s72
        ''')
        for b in range(3):
            a(f'''
            s_add_u32 m0, s71, {(3*aa+b)*1024}
            s_nop 0
            buffer_load_dwordx4 v{2+b}, s[{S_WS}:{S_WS+3}], s72 offen lds {ld_flags}
            '''); vm.issue('KV')
    a(f'''
    s_lshr_b32 s72, s3, 2
    s_and_b32 s73, s3, 3
    s_lshl_b32 s74, s61, 7
    s_lshl_b32 s70, s73, 5
    s_add_u32 s74, s74, s70
    s_lshl_b32 s70, s60, 1
    s_add_u32 s70, s70, s72
    s_mul_i32 s70, s70, 81920
    s_add_u32 s70, s70, {QKV_OFF}
    v_and_b32 v5, 31, v1
    v_lshrrev_b32 v6, 5, v1
    v_add_u32 v7, s74, v5
    v_mul_u32_u24 v8, 40, v7
    v_lshl_add_u32 v9, v6, 4, v8
    v_add_u32 v10, 32, v8
    v_cmp_eq_u32 vcc, 0, v6
    v_mov_b32 v11, 0x7fffff00
    v_cndmask_b32 v10, v11, v10, vcc
    buffer_load_dwordx4 v[{Q0}:{Q0+3}], v9, s[{S_WS}:{S_WS+3}], s70 offen {ld_flags}
    buffer_load_dwordx2 v[{Q1}:{Q1+1}], v10, s[{S_WS}:{S_WS+3}], s70 offen {ld_flags}
    v_lshlrev_b32 v12, 2, v7
    s_mov_b32 s70, {G_OFF}
    buffer_load_dword v13, v12, s[{S_WS}:{S_WS+3}], s70 offen {ld_flags}
    v_mov_b32 v11, 0x3f80
    v_cndmask_b32 v{Q1+2}, 0, v11, vcc
    v_mov_b32 v{Q1+3}, 0
    ''')
    vm.issue('Q'); vm.issue('Q'); vm.issue('G')
    MS = [40 + 2*i for i in range(10)] + [76 + 2*i for i in range(6)]
    a('''
    v_lshlrev_b32 v14, 2, v6
    v_sub_u32 v14, v5, v14
    ''')
    for r in range(16):
        c = 8*(r >> 2) + (r & 3)
        a(f'v_cmp_le_i32 s[{MS[r]}:{MS[r]+1}], {c}, v14')
    a('v_mov_b32 v15, 0xffff')
    a('v_mov_b32 v16, 0xffff0000')
    for i in range(8):
        a(f'''
        v_cndmask_b32 v17, 0, v15, s[{MS[2*i]}:{MS[2*i]+1}]
        v_cndmask_b32 v18, 0, v16, s[{MS[2*i+1]}:{MS[2*i+1]+1}]
        v_or_b32 v{M8+i}, v17, v18
        ''')
    a('''
    s_lshr_b32 s75, s74, 5
    s_sub_i32 s75, 8, s75
    s_max_i32 s75, s75, 0
    ''')
    for kb in range(9):
        a(f'''
        s_cmp_gt_u32 s75, {kb}
        s_cselect_b32 s70, 0xf149, 0
        v_mov_b32 v{KF+8*kb+6}, s70
        v_mov_b32 v{KF+8*kb+7}, 0
        ''')
    a(f'''
    s_mul_i32 s70, s72, 36864
    s_mul_i32 s64, s73, 1536
    s_add_u32 s70, s70, s64
    v_mul_u32_u24 v19, 48, v5
    v_add_u32 v19, s70, v19
    v_add_u32 v20, 32, v19
    v_lshl_add_u32 v19, v6, 4, v19
    v_bfe_u32 v21, v1, 4, 1
    v_bfe_u32 v22, v1, 2, 2
    v_and_b32 v23, 3, v1
    v_lshl_add_u32 v22, v6, 2, v22
    v_mul_u32_u24 v22, 48, v22
    v_lshl_add_u32 v22, v21, 5, v22
    v_lshl_add_u32 v22, v23, 3, v22
    s_add_u32 s70, s70, 18432
    v_add_u32 v22, s70, v22
    ''')
    vm.wait_for(a, lambda t: t == 'KV')
    a(f'''
    s_cmp_eq_u32 s67, 0
    s_cbranch_scc1 L_nopatch_{a.name}
    v_mul_u32_u24 v24, 48, v1
    v_add_u32 v24, s71, v24
    v_mov_b32 v26, 0x3f80
    v_mov_b32 v27, 0
    ds_write_b64 v24, v[26:27] offset:40
    ds_write_b64 v24, v[26:27] offset:{40+64*48}
    ds_write_b64 v24, v[26:27] offset:{40+128*48}
    ''')
    a.label(f'L_nopatch_{a.name}')
    a('s_waitcnt lgkmcnt(0)')
    a('s_barrier')
    for kb in range(9):
        a(f'ds_read_b128 v[{KF+8*kb}:{KF+8*kb+3}], v19 offset:{kb*1536}')
        a(f'ds_read_b64 v[{KF+8*kb+4}:{KF+8*kb+5}], v20 offset:{kb*1536}')
    vm.wait_for(a, lambda t: t == 'Q')
    def smfma(dst, kb, c):
        a(f'v_mfma_f32_32x32x16_bf16 v[{dst}:{dst+15}], v[{KF+8*kb}:{KF+8*kb+3}], v[{Q0}:{Q0+3}], {c}')
        a(f'v_mfma_f32_32x32x16_bf16 v[{dst}:{dst+15}], v[{KF+8*kb+4}:{KF+8*kb+7}], v[{Q1}:{Q1+3}], v[{dst}:{dst+15}]')
    a('s_waitcnt lgkmcnt(0)')
    MX = 28
    def maxes(S, first):
        for i in range(8):
            if first and i == 0:
                a(f'v_max_f32 v{MX}, v{S}, v{S+1}')
            else:
                a(f'v_max3_f32 v{MX}, v{MX}, v{S+2*i}, v{S+2*i+1}')
    smfma(SBUF[0], 0, '0'); smfma(SBUF[1], 8, '0')
    smfma(SC, 1, '0')
    for r in range(16):
        a(f'v_cndmask_b32 v{SBUF[0]+r}, v{SBUF[0]+r}, v{SBUF[1]+r}, s[{MS[r]}:{MS[r]+1}]')
    smfma(SBUF[1], 2, '0')
    maxes(SBUF[0], True)
    order = [(SC, 1), (SBUF[1], 2)]
    bufs = [SBUF[0], SC, SBUF[1]]
    bufof = {1: SC, 2: SBUF[1]}
    rot = [SBUF[0], SC, SBUF[1]]
    for kb in range(3, 8): bufof[kb] = rot[(kb - 3) % 3]
    for kb in range(1, 8):
        if kb + 2 <= 7: smfma(bufof[kb + 2], kb + 2, '0')
        maxes(bufof[kb], False)
    a(f'''
    v_mov_b32 v29, v{MX}
    v_mov_b32 v30, v{MX}
    v_permlane32_swap_b32 v29, v30
    v_max_f32 v{MX}, v29, v30
    v_sub_f32 v{MX}, 0, v{MX}
    ''')
    for r in range(16): a(f'v_mov_b32 v{NEGM+r}, v{MX}')
    CN = f'v[{NEGM}:{NEGM+15}]'
    def vreads(kb, VF):
        for aa in range(2):
            for u in range(2):
                a(f'ds_read_b64_tr_b16 v[{VF+4*aa+2*u}:{VF+4*aa+2*u+1}], v22 offset:{kb*1536 + aa*768 + u*384}')
    def exps(S, Pd):
        for i in range(8):
            a(f'v_exp_f32 v{S+2*i}, v{S+2*i}')
            a(f'v_exp_f32 v{S+2*i+1}, v{S+2*i+1}')
            a(f'v_cvt_pk_bf16_f32 v{Pd+i}, v{S+2*i}, v{S+2*i+1}')
    def pv(VF, Pd, first=False):
        for aa in range(2):
            c = '0' if (first and aa == 0) else f'v[{O}:{O+15}]'
            a(f'v_mfma_f32_32x32x16_bf16 v[{O}:{O+15}], v[{VF+4*aa}:{VF+4*aa+3}], v[{Pd+4*aa}:{Pd+4*aa+3}], {c}')
    vreads(0, VFB[0]); vreads(8, VFB[1])
    smfma(SBUF[0], 0, CN); smfma(SBUF[1], 8, CN)
    smfma(SC, 1, CN)
    for r in range(16):
        a(f'v_cndmask_b32 v{SBUF[0]+r}, v{SBUF[0]+r}, v{SBUF[1]+r}, s[{MS[r]}:{MS[r]+1}]')
    smfma(SBUF[1], 2, CN)
    exps(SBUF[0], P)
    for i in range(8):
        a(f'v_and_b32 v{P2+i}, v{P+i}, v{M8+i}')
        a(f'v_xor_b32 v{P+i}, v{P+i}, v{P2+i}')
    a('s_waitcnt lgkmcnt(0)')
    pv(VFB[0], P, first=True); pv(VFB[1], P2)
    PB = [P, P2]
    for kb in range(1, 8):
        VF = VFB[kb % 2]
        vreads(kb, VF)
        if kb + 2 <= 7: smfma(bufof[kb + 2], kb + 2, CN)
        exps(bufof[kb], PB[kb % 2])
        a('s_waitcnt lgkmcnt(0)')
        pv(VF, PB[kb % 2])
    a(f'''
    v_mov_b32 v29, v{O+8}
    v_mov_b32 v30, v{O+8}
    v_permlane32_swap_b32 v29, v30
    v_rcp_f32 v30, v30
    ''')
    vm.wait_for(a, lambda t: t == 'G')
    a(f'''
    v_mul_f32 v30, v30, v13
    s_lshl_b32 s70, s73, 5
    v_add_u32 v24, s70, v5
    v_mul_u32_u24 v24, 80, v24
    s_mul_i32 s70, s72, 40
    s_add_u32 s70, s70, {OST}
    v_add_u32 v24, s70, v24
    v_lshl_add_u32 v24, v6, 3, v24
    ''')
    for i in range(3):
        for r in range(4): a(f'v_mul_f32 v{O+4*i+r}, v{O+4*i+r}, v30')
        a(f'v_cvt_pk_bf16_f32 v{O+4*i}, v{O+4*i}, v{O+4*i+1}')
        a(f'v_cvt_pk_bf16_f32 v{O+4*i+1}, v{O+4*i+2}, v{O+4*i+3}')
    a(f'ds_write_b64 v24, v[{O}:{O+1}]')
    a(f'ds_write_b64 v24, v[{O+4}:{O+5}] offset:16')
    a(f'''
    s_mov_b64 exec, 0xffffffff
    ds_write_b64 v24, v[{O+8}:{O+9}] offset:32
    s_mov_b64 exec, -1
    s_waitcnt lgkmcnt(0)
    s_barrier
    ''')
    a(f'''
    s_lshl_b32 s70, s61, 7
    s_mul_i32 s70, s70, 1280
    s_mul_i32 s64, s60, 80
    s_add_u32 s70, s70, s64
    s_add_u32 s70, s70, {O_OFF}
    ''')
    for i in range(2):
        a(f'''
        v_add_u32 v2, {512*i}, v0
        v_mul_u32_u24 v3, 0xcccd, v2
        v_lshrrev_b32 v3, 18, v3
        v_mul_u32_u24 v4, 5, v3
        v_sub_u32 v4, v2, v4
        v_mul_u32_u24 v{7+i}, 1280, v3
        v_lshl_add_u32 v{7+i}, v4, 4, v{7+i}
        v_lshlrev_b32 v2, 4, v2
        v_add_u32 v2, {OST}, v2
        ds_read_b128 v[{32+4*i}:{32+4*i+3}], v2
        ''')
    a(f'''
    v_cmp_le_u32 vcc, 128, v0
    v_mov_b32 v9, 0x7fffff00
    v_cndmask_b32 v8, v8, v9, vcc
    s_waitcnt lgkmcnt(1)
    buffer_store_dwordx4 v[32:35], v7, s[{S_WS}:{S_WS+3}], s70 offen {st_flags}
    s_waitcnt lgkmcnt(0)
    buffer_store_dwordx4 v[36:39], v8, s[{S_WS}:{S_WS+3}], s70 offen {st_flags}
    ''')
    return vm
```

```python
from asm import *
from gen1 import *

G2_D = 3
G2_R = G2_D + 1
K3_LDS = 4 * G2_R * 5120

def gemm2(a, ld_flags='', lds_base=0):
    vm = VM()
    D, R = G2_D, G2_R
    ACC = 176
    ACT = 112
    WF = [72, 92]
    def acc(mt, nt): return ACC + (mt * 5 + nt) * 4
    def act(step, i): return ACT + (step % (D + 1)) * 16 + 4 * i
    a('''
    s_and_b32 s62, s2, 7
    s_lshr_b32 s63, s2, 3
    s_lshr_b32 s60, s62, 1
    s_lshl_b32 s60, s60, 3
    s_lshr_b32 s64, s63, 2
    s_add_u32 s60, s60, s64
    s_and_b32 s61, s62, 1
    s_lshl_b32 s61, s61, 2
    s_and_b32 s64, s63, 3
    s_add_u32 s61, s61, s64
    v_and_b32 v2, 15, v1
    v_lshrrev_b32 v3, 4, v1
    v_lshlrev_b32 v4, 4, v1
    ''')
    for b in range(5):
        a(f'''
        v_add_u32 v5, {64*b}, v1
        v_mul_u32_u24 v6, 0xcccd, v5
        v_lshrrev_b32 v6, 19, v6
        v_mul_u32_u24 v7, 10, v6
        v_sub_u32 v7, v5, v7
        v_mul_u32_u24 v{10+b}, 1280, v6
        v_lshl_add_u32 v{10+b}, v7, 4, v{10+b}
        v_bfe_u32 v8, v6, 2, 2
        v_lshlrev_b32 v8, 3, v8
        v_lshrrev_b32 v9, 4, v6
        v_lshl_add_u32 v8, v9, 2, v8
        v_and_b32 v9, 3, v6
        v_add_u32 v8, v8, v9
        v_mul_u32_u24 v{15+b}, 1280, v8
        v_lshl_add_u32 v{15+b}, v7, 4, v{15+b}
        ''')
    a(f'''
    v_bfe_u32 v5, v1, 2, 2
    v_and_b32 v6, 3, v1
    v_lshl_add_u32 v5, v3, 2, v5
    v_mul_u32_u24 v20, 160, v5
    v_lshl_add_u32 v20, v6, 3, v20
    s_mul_i32 s65, s3, {R*5120}
    s_add_u32 s65, s65, {lds_base}
    v_add_u32 v20, s65, v20
    ''')
    a('''
    v_mul_u32_u24 v21, 1280, v2
    v_lshl_add_u32 v21, v3, 4, v21
    v_add_u32 v22, 20480, v21
    v_add_u32 v23, 40960, v21
    v_add_u32 v24, 61440, v21
    ''')
    a(f'''
    s_mul_i32 s66, s60, 192
    s_mul_i32 s64, s3, 24
    s_add_u32 s66, s66, s64
    s_lshl_b32 s66, s66, 10
    s_add_u32 s66, s66, {H_OFF}
    s_add_u32 s67, s66, 98304
    s_mul_i32 s68, s3, {12*40960}
    s_mul_i32 s64, s61, 160
    s_add_u32 s68, s68, s64
    s_mul_i32 s70, s3, {5*40960}
    s_add_u32 s70, s70, s64
    s_mul_i32 s69, s60, {64*1280}
    s_mul_i32 s64, s3, {5*64}
    s_add_u32 s69, s69, s64
    s_add_u32 s69, s69, {O_OFF}
    ''')
    a(f'''
    v_lshlrev_b32 v5, 2, v2
    s_lshl_b32 s64, s60, 8
    s_add_u32 s64, s64, {G_OFF}
    ''')
    for mt in range(4):
        a(f'buffer_load_dword v{25+mt}, v5, s[{S_WS}:{S_WS+3}], s64 offen offset:{64*mt} {ld_flags}'); vm.issue(('G',))
    for i in range(80): a(f'v_mov_b32 v{ACC+i}, 0')
    NS = 17
    def issue(step):
        slot = step % R
        if step < 12:
            for aa in range(2):
                for u in range(2):
                    r0 = act(step, 2*aa + u)
                    a(f'buffer_load_dwordx4 v[{r0}:{r0+3}], v4, s[{S_WS}:{S_WS+3}], s{66+aa} offen offset:{1024*u} {ld_flags}'); vm.issue(('S', step))
            for b in range(5):
                a(f's_add_u32 m0, s65, {slot*5120 + b*1024}')
                a(f'buffer_load_dwordx4 v{10+b}, s[{S_W2}:{S_W2+3}], s68 offen lds'); vm.issue(('S', step))
            a('s_add_u32 s66, s66, 2048\ns_add_u32 s67, s67, 2048\ns_add_u32 s68, s68, 40960')
        else:
            so = step - 12
            for mt in range(4):
                r0 = act(step, mt)
                a(f'buffer_load_dwordx4 v[{r0}:{r0+3}], v{21+mt}, s[{S_WS}:{S_WS+3}], s69 offen offset:{64*so} {ld_flags}'); vm.issue(('S', step))
            for b in range(5):
                a(f's_add_u32 m0, s65, {slot*5120 + b*1024}')
                a(f'buffer_load_dwordx4 v{15+b}, s[{S_WO}:{S_WO+3}], s70 offen lds'); vm.issue(('S', step))
            a('s_add_u32 s70, s70, 40960')
    def trreads(step):
        W = WF[step % 2]; slot = step % R
        for nt in range(5):
            for u in range(2):
                a(f'ds_read_b64_tr_b16 v[{W+4*nt+2*u}:{W+4*nt+2*u+1}], v20 offset:{slot*5120 + u*2560 + nt*32}')
    for st in range(D): issue(st)
    vm.wait_for(a, lambda t: t == ('S', 0))
    trreads(0)
    for st in range(NS):
        if st + D < NS: issue(st + D)
        nxt = st + 1 < NS
        if nxt:
            vm.wait_for(a, lambda t: t == ('S', st + 1))
            trreads(st + 1)
        if st < 12:
            for aa in range(2):
                x0 = act(st, 2*aa); x1 = act(st, 2*aa + 1)
                a(f'v_swap_b32 v{x0+2}, v{x1}')
                a(f'v_swap_b32 v{x0+3}, v{x1+1}')
        if st == 12:
            for mt in range(4):
                a(f'v_sub_f32 v{25+mt}, 1.0, v{25+mt}')
            for mt in range(4):
                for nt in range(5):
                    for r in range(4): a(f'v_mul_f32 v{acc(mt,nt)+r}, v{acc(mt,nt)+r}, v{25+mt}')
        W = WF[st % 2]
        for nt in range(5):
            rem = (10 - 2*(nt+1)) + (10 if nxt else 0)
            a(f's_waitcnt lgkmcnt({min(rem, 15)})')
            for mt in range(4):
                x = act(st, mt)
                a(f'v_mfma_f32_16x16x32_bf16 v[{acc(mt,nt)}:{acc(mt,nt)+3}], v[{W+4*nt}:{W+4*nt+3}], v[{x}:{x+3}], v[{acc(mt,nt)}:{acc(mt,nt)+3}]')
    a('s_barrier')
    a(f'v_add_u32 v5, {lds_base}, v4')
    for w in range(4):
        a(f's_cmp_eq_u32 s3, {w}')
        a(f's_cbranch_scc0 L_red{w}_{a.name}')
        for mt in range(4):
            if mt == w: continue
            for nt in range(5):
                off = ((mt * 4 + w) * 5 + nt) * 1024
                if off < 65536:
                    a(f'ds_write_b128 v5, v[{acc(mt,nt)}:{acc(mt,nt)+3}] offset:{off}')
                else:
                    a(f'v_add_u32 v6, 65536, v5')
                    a(f'ds_write_b128 v6, v[{acc(mt,nt)}:{acc(mt,nt)+3}] offset:{off-65536}')
        a('s_waitcnt lgkmcnt(0)')
        a('s_barrier')
        k = 0
        a(f'v_add_u32 v6, {w*4*5*1024}, v5')
        for src in range(4):
            if src == w: continue
            for nt in range(5):
                a(f'ds_read_b128 v[{72+4*k}:{72+4*k+3}], v6 offset:{(src*5+nt)*1024}'); k += 1
        k = 0
        for si in range(3):
            for nt in range(5):
                a(f's_waitcnt lgkmcnt({min(14-k, 15)})')
                for r in range(4):
                    src_r = acc(w, nt) + r if si == 0 else 140 + 4*nt + r
                    a(f'v_add_f32 v{140+4*nt+r}, v{src_r}, v{72+4*k+r}')
                k += 1
        a(f's_branch L_redone_{a.name}')
        a('s_nop 7')
        a.label(f'L_red{w}_{a.name}')
    a.label(f'L_redone_{a.name}')
    a(f'''
    s_lshl_b32 s64, s60, 6
    s_lshl_b32 s71, s3, 4
    s_add_u32 s64, s64, s71
    s_mul_i32 s64, s64, 1280
    s_mul_i32 s71, s61, 160
    s_add_u32 s64, s64, s71
    v_mul_u32_u24 v5, 1280, v2
    v_lshl_add_u32 v5, v3, 3, v5
    ''')
    for nt in range(5):
        A = 140 + 4*nt
        a(f'v_cvt_pk_bf16_f32 v{A}, v{A}, v{A+1}')
        a(f'v_cvt_pk_bf16_f32 v{A+1}, v{A+2}, v{A+3}')
        a(f'buffer_store_dwordx2 v[{A}:{A+1}], v5, s[{S_OUT}:{S_OUT+3}], s64 offen offset:{32*nt}')
    return vm
```

```python
import sys
from gen1 import *
from gen_attn import *
try:
    from gen_g2 import *
    HAVE_G2 = True
except ImportError:
    HAVE_G2 = False

def build_all():
    out = []
    hdr = '; generated\n'
    hdr += f'; @launch kernel=k1_kernel grid=(256,1,1) block=(512,1,1) lds={K1_LDS}\n'
    hdr += f'; @launch kernel=k2_kernel grid=(256,1,1) block=(512,1,1) lds={K2_LDS}\n'
    if HAVE_G2: hdr += f'; @launch kernel=k3_kernel grid=(256,1,1) block=(256,1,1) lds={K3_LDS}\n'
    hdr += '.amdgcn_target "amdgcn-amd-amdhsa--gfx950"\n.text\n'
    out.append(hdr)
    ks = [('k1', gemm1), ('k2', attention)] + ([('k3', gemm2)] if HAVE_G2 else [])
    for nm, fn in ks:
        a = Asm(); a.name = nm
        prologue(a)
        fn(a)
        a('s_waitcnt vmcnt(0)')
        a.label(f'L_END_{nm}')
        a('s_endpgm')
        a.finalize()
        out.append(kernel_wrap(f'{nm}_kernel', a.text(), 256))
    out.append('.section .rodata,"a"\n.p2align 6\n')
    for nm, fn in ks:
        out.append('.p2align 6\n' + kd(f'{nm}_kernel', 256, 96))
    return ''.join(out)

if __name__ == '__main__':
    open(sys.argv[1], 'w').write(build_all())
```

```python
import re

REG_RE = re.compile(r'^(-|abs\()?([vsa])(\d+)\)?$')
RNG_RE = re.compile(r'^([vsa])\[(\d+):(\d+)\]$')

def regs_of(tok):
    tok = tok.strip()
    if tok.startswith('-'): tok = tok[1:]
    if tok.startswith('abs(') and tok.endswith(')'): tok = tok[4:-1]
    m = RNG_RE.match(tok)
    if m:
        return [(m.group(1), i) for i in range(int(m.group(2)), int(m.group(3)) + 1)]
    m = re.match(r'^([vsa])(\d+)$', tok)
    if m: return [(m.group(1), int(m.group(2)))]
    if tok == 'vcc': return [('s', 106), ('s', 107)]
    if tok == 'vcc_lo': return [('s', 106)]
    if tok == 'vcc_hi': return [('s', 107)]
    if tok == 'exec': return [('s', 126), ('s', 127)]
    if tok == 'm0': return [('s', 124)]
    return []

TRANS = ('v_exp_f32', 'v_log_f32', 'v_rcp_f32', 'v_rsq_f32', 'v_sqrt_f32', 'v_sin_f32', 'v_cos_f32', 'v_rcp_iflag_f32')

class Ins:
    __slots__ = ('text', 'mn', 'ops', 'mods', 'wr', 'rd', 'kind', 'passes', 'srcA', 'srcB', 'srcC', 'label', 'nws', 'comment')
    def __init__(self, text):
        self.text = text
        self.label = None
        self.wr = []; self.rd = []; self.kind = 'other'; self.passes = 0
        self.srcA = self.srcB = self.srcC = []
        self.nws = 1
        t = text.split(';')[0].strip()
        if t.endswith(':'):
            self.label = t[:-1]; self.kind = 'label'; self.nws = 0; self.mn = ''; return
        if t.startswith('.') or t == '':
            self.kind = 'directive'; self.nws = 0; self.mn = ''; return
        parts = t.split(None, 1)
        self.mn = mn = parts[0]
        rest = parts[1] if len(parts) > 1 else ''
        rest = re.sub(r'quad_perm:\[[0-9,]+\]', 'quad_perm', rest)
        ops = [o.strip() for o in rest.split(',')] if rest else []
        mods = []
        if ops:
            sp = ops[-1].split()
            ops[-1] = sp[0] if sp else ''
            mods = sp[1:]
        self.ops = ops; self.mods = mods
        for md in mods:
            if md.startswith('offset:'):
                ov = int(md[7:], 0)
                lim = 65535 if mn.startswith('ds_') else 4095
                assert 0 <= ov <= lim, text
        R = regs_of
        if mn == 's_nop':
            self.kind = 'nop'; self.nws = int(ops[0], 0) + 1
        elif mn.startswith('v_mfma'):
            self.kind = 'mfma'
            self.passes = 8 if '32x32' in mn else 4
            self.wr = R(ops[0]); self.srcA = R(ops[1]); self.srcB = R(ops[2]); self.srcC = R(ops[3])
            self.rd = self.srcA + self.srcB + self.srcC
        elif mn.startswith('v_cmp'):
            self.kind = 'valu'; self.wr = R(ops[0]); self.rd = sum((R(o) for o in ops[1:]), [])
        elif mn in ('v_readfirstlane_b32', 'v_readlane_b32'):
            self.kind = 'valu'; self.wr = R(ops[0]); self.rd = sum((R(o) for o in ops[1:]), [])
        elif mn.startswith('v_permlane') and 'swap' in mn:
            self.kind = 'valu'; self.wr = R(ops[0]) + R(ops[1]); self.rd = R(ops[0]) + R(ops[1])
        elif mn == 'v_swap_b32':
            self.kind = 'valu'; self.wr = R(ops[0]) + R(ops[1]); self.rd = R(ops[0]) + R(ops[1])
        elif mn in ('v_add_co_u32', 'v_sub_co_u32', 'v_addc_co_u32', 'v_subb_co_u32'):
            self.kind = 'valu'; self.wr = R(ops[0]) + R(ops[1]); self.rd = sum((R(o) for o in ops[2:]), [])
        elif mn.startswith('v_'):
            self.kind = 'valu'; self.wr = R(ops[0]); self.rd = sum((R(o) for o in ops[1:]), [])
            if mn.startswith(('v_fmac', 'v_dot2c', 'v_pk_fmac', 'v_mac')): self.rd += R(ops[0])
            if mn.startswith('v_cndmask') and len(ops) == 3: self.rd += R('vcc')
        elif mn.startswith('ds_read') or mn.startswith('ds_add_rtn') or mn.startswith('ds_bpermute') or mn.startswith('ds_swizzle') or mn.startswith('ds_permute'):
            self.kind = 'ds'; self.wr = R(ops[0]); self.rd = sum((R(o) for o in ops[1:]), [])
        elif mn.startswith('ds_write') or mn == 'ds_add_u32':
            self.kind = 'ds'; self.rd = sum((R(o) for o in ops), [])
        elif mn.startswith('buffer_load') or mn.startswith('global_load'):
            self.kind = 'vmem'
            if 'lds' in mods or '_lds_' in mn:
                self.rd = sum((R(o) for o in ops), []) + R('m0'); self.kind = 'vmem_lds'
            else:
                self.wr = R(ops[0]); self.rd = sum((R(o) for o in ops[1:]), [])
        elif mn.startswith('buffer_store') or mn.startswith('global_store'):
            self.kind = 'vmem_st'; self.rd = sum((R(o) for o in ops), [])
        elif mn.startswith('buffer_atomic') or mn.startswith('global_atomic'):
            self.kind = 'vmem_st'; self.rd = sum((R(o) for o in ops), [])
            if 'sc0' in mods: self.wr = R(ops[0])
        elif mn.startswith('buffer_wbl2') or mn.startswith('buffer_inv'):
            self.kind = 'vmem_misc'
        elif mn.startswith('s_load') or mn.startswith('s_buffer_load') or mn in ('s_memtime', 's_memrealtime'):
            self.kind = 'smem'; self.wr = R(ops[0]); self.rd = sum((R(o) for o in ops[1:]), [])
        elif mn.startswith('s_cmp') or mn.startswith('s_bitcmp'):
            self.kind = 'salu'; self.rd = sum((R(o) for o in ops), [])
        elif mn.startswith('s_cbranch') or mn in ('s_branch', 's_endpgm', 's_barrier', 's_waitcnt', 's_setprio', 's_sleep'):
            self.kind = 'ctl'
        elif mn.endswith('saveexec_b64'):
            self.kind = 'salu'; self.wr = R(ops[0]) + R('exec'); self.rd = R(ops[1]) + R('exec')
        elif mn.startswith('s_'):
            self.kind = 'salu'; self.wr = R(ops[0]); self.rd = sum((R(o) for o in ops[1:]), [])
        else:
            raise ValueError("unknown instr: " + text)

def need_ws(p, c):
    n = 0
    pw = set(p.wr)
    if p.kind == 'valu':
        pv = {r for r in pw if r[0] in 'va'}
        ps = {r for r in pw if r[0] == 's'}
        if c.kind == 'mfma' and pv & set(c.rd): n = max(n, 2)
        if ps:
            if c.kind == 'valu' and ps & set(c.rd):
                n = max(n, 4 if c.mn in ('v_readlane_b32', 'v_writelane_b32') else 2)
            if c.kind == 'mfma' and ps & set(c.rd): n = max(n, 2)
            if c.kind in ('vmem', 'vmem_lds', 'vmem_st') and ps & set(c.rd): n = max(n, 5)
            if c.kind in ('salu', 'smem') and ps & set(c.rd): n = max(n, 1)
            if ('s', 126) in ps or ('s', 127) in ps:
                if c.kind == 'mfma': n = max(n, 4)
        if pv:
            if c.mn in ('v_readlane_b32', 'v_readfirstlane_b32') and pv & set(c.rd): n = max(n, 1)
            if c.mn.startswith('v_permlane') and pv & set(c.rd): n = max(n, 2)
            if c.kind == 'valu' and ('dpp' in c.text or 'row_' in c.text or 'quad_perm' in c.text) and pv & set(c.rd): n = max(n, 2)
            if p.mn in TRANS and c.kind in ('valu', 'mfma', 'vmem_st', 'ds') and c.mn not in TRANS and pv & set(c.rd): n = max(n, 1)
            if p.mn in TRANS and c.mn in TRANS and pv & set(c.rd): n = max(n, 1)
    if p.kind == 'mfma':
        d = set(p.wr)
        big = 12 if p.passes == 8 else 8
        if c.kind == 'mfma':
            if d & (set(c.srcA) | set(c.srcB)): n = max(n, big)
            if d & set(c.srcC):
                if not (list(p.wr) == list(c.srcC) and p.passes == c.passes):
                    n = max(n, 10 if p.passes == 8 else 6)
            elif d & set(c.wr):
                n = max(n, big)
        elif c.kind in ('valu', 'ds', 'vmem', 'vmem_st', 'vmem_lds'):
            if d & (set(c.rd) | set(c.wr)): n = max(n, big)
        if c.kind == 'valu' and set(p.srcC) & set(c.wr): n = max(n, 7 if p.passes == 8 else 3)
    if p.kind == 'vmem_st' and ('x4' in p.mn or 'x3' in p.mn):
        data = set(regs_of(p.ops[0])) if p.mn.startswith('buffer') else set(regs_of(p.ops[1]))
        if data & set(c.wr): n = max(n, 2 if c.kind == 'valu' else 1)
    if p.kind == 'ds' and p.mn.startswith('ds_write') and ('b128' in p.mn or 'b96' in p.mn):
        data = set(regs_of(p.ops[1]))
        if data & set(c.wr): n = max(n, 2 if c.kind == 'valu' else 1)
    if p.kind == 'salu' and ('s', 124) in pw and c.kind == 'vmem_lds': n = max(n, 1)
    if p.kind == 'salu' and (('s',126) in pw or ('s',127) in pw) and c.kind in ('valu',) and (c.mn.startswith('v_readlane') or c.mn.startswith('v_readfirstlane') or c.mn.startswith('v_permlane')):
        n = max(n, 1)
    return n

class Asm:
    def __init__(self):
        self.ins = []
    def __call__(self, text):
        for line in text.strip('\n').split('\n'):
            line = line.strip()
            if not line or line.startswith(';'):
                continue
            self.ins.append(Ins(line))
    def label(self, name): self.ins.append(Ins(name + ':'))
    def nop(self, n): self.ins.append(Ins('s_nop %d' % n))
    def finalize(self, window=24):
        out = []
        for c in self.ins:
            if c.kind in ('label', 'directive'):
                out.append(c); continue
            dist = 0; need = 0
            for p in reversed(out):
                if p.kind in ('label', 'directive'): continue
                if dist >= window: break
                w = need_ws(p, c)
                if w > dist: need = max(need, w - dist)
                dist += p.nws
            while need > 0:
                k = min(need, 16)
                out.append(Ins('s_nop %d' % (k - 1))); need -= k
            out.append(c)
        self.ins = out
    def text(self):
        o = []
        for i in self.ins:
            if i.kind == 'label' or i.kind == 'directive': o.append(i.text)
            else: o.append('    ' + i.text)
        return '\n'.join(o) + '\n'

def vr(a, n=1):
    return 'v%d' % a if n == 1 else 'v[%d:%d]' % (a, a + n - 1)
def sr(a, n=1):
    return 's%d' % a if n == 1 else 's[%d:%d]' % (a, a + n - 1)
```

```python
import sys, math
from asm import *
from gen1 import VM, S_X, S_WQKV, S_W1, S_W2, S_WO, S_GW, S_OUT, S_WS, QKV_OFF, H_OFF, O_OFF, G_OFF, CQ, f32bits
from stamp import Stamper

G1_R = 4
G1_SLOT = 32768
G1_LDS = G1_R * G1_SLOT
G1_STAGING = 0

def gemm1(a, st_flags='', stamps=False, after_A=None, after_B=None):
    ST = Stamper(a, stamps, base=76, maxn=22)
    ST('start')
    ST.real('rt0')
    XF = 96; ACC = 64; WFB = [32, 48]
    def xf(s, t): return XF + (s * 2 + t) * 4
    def acc(t, nt): return ACC + (t * 4 + nt) * 4
    vm = VM()
    nm = a.name
    a(f'''
    s_and_b32 s63, s2, 7
    s_lshr_b32 s64, s2, 3
    s_lshr_b32 s60, s63, 1
    s_lshl_b32 s60, s60, 2
    s_and_b32 s65, s64, 3
    s_add_u32 s60, s60, s65
    s_lshr_b32 s62, s64, 2
    s_and_b32 s61, s63, 1
    s_lshl_b32 s61, s61, 3
    s_add_u32 s61, s61, s62
    s_cmp_eq_u32 s61, 15
    s_cbranch_scc1 L_G1SKIP_{nm}
    ''')
    a('''
    v_lshrrev_b32 v6, 3, v1
    v_lshrrev_b32 v7, 4, v1
    v_and_b32 v8, 7, v1
    s_lshl_b32 s64, s3, 4
    v_add_u32 v9, s64, v6
    v_mul_u32_u24 v4, 1280, v9
    v_xor_b32 v10, v8, v7
    v_lshl_add_u32 v4, v10, 4, v4
    v_xor_b32 v10, 4, v10
    v_add_u32 v9, 8, v9
    v_mul_u32_u24 v5, 1280, v9
    v_lshl_add_u32 v5, v10, 4, v5
    s_mul_i32 s66, s60, 163840
    ''')
    a('''
    s_lshr_b32 s64, s3, 2
    s_lshl_b32 s64, s64, 5
    s_and_b32 s65, s3, 1
    s_lshl_b32 s65, s65, 4
    s_add_u32 s64, s64, s65
    v_add_u32 v9, s64, v6
    v_and_b32 v10, 2, v6
    v_xor_b32 v10, v8, v10
    s_bfe_u32 s65, s3, 0x10001
    s_lshl_b32 s65, s65, 7
    v_lshl_add_u32 v13, v10, 4, s65
    v_xor_b32 v10, 4, v10
    v_lshl_add_u32 v14, v10, 4, s65
    v_mul_u32_u24 v2, 3840, v9
    v_add_u32 v2, v2, v13
    v_add_u32 v10, 8, v9
    v_mul_u32_u24 v3, 3840, v10
    v_add_u32 v3, v3, v14
    s_lshl_b32 s67, s61, 8
    ''')
    a('''
    s_lshl_b32 s68, s3, 11
    s_lshr_b32 s64, s3, 2
    s_lshl_b32 s69, s64, 13
    s_bfe_u32 s65, s3, 0x10001
    s_lshl_b32 s65, s65, 12
    s_add_u32 s69, s69, s65
    s_and_b32 s65, s3, 1
    s_lshl_b32 s65, s65, 11
    s_add_u32 s69, s69, s65
    s_add_u32 s69, s69, 16384
    ''')
    def issue_A(sg):
        slot = (sg % G1_R) * G1_SLOT
        for i in range(2):
            a(f's_add_u32 m0, s68, {slot + 1024*i}')
            a(f'buffer_load_dwordx4 v{4+i}, s[{S_X}:{S_X+3}], s66 offen lds'); vm.issue(('A', sg))
        for i in range(2):
            a(f's_add_u32 m0, s69, {slot + 1024*i}')
            a(f'buffer_load_dwordx4 v{2+i}, s[{S_WQKV}:{S_WQKV+3}], s67 offen lds'); vm.issue(('A', sg))
        a('s_add_u32 s66, s66, 128')
        a(f's_add_u32 s67, s67, {64*3840}')
    D = 3
    for sg in range(D): issue_A(sg)
    ST('issued')
    a('''
    v_mul_u32_u24 v11, 3072, v9
    v_add_u32 v11, v11, v13
    v_add_u32 v10, 8, v9
    v_mul_u32_u24 v12, 3072, v10
    v_add_u32 v12, v12, v14
    s_and_b32 s64, s2, 1
    s_mul_i32 s70, s64, 6
    s_add_u32 s70, s70, s62
    s_mov_b32 s71, s70
    s_lshl_b32 s70, s70, 8
    ''')
    def issue_B(sg):
        slot = ((10 + sg) % G1_R) * G1_SLOT
        for i in range(2):
            a(f's_add_u32 m0, s69, {slot + 1024*i}')
            a(f'buffer_load_dwordx4 v{11+i}, s[{S_W1}:{S_W1+3}], s70 offen lds'); vm.issue(('B', sg))
        a(f's_add_u32 s70, s70, {64*3072}')
    a('''
    v_and_b32 v6, 15, v1
    v_lshrrev_b32 v8, 1, v6
    v_xor_b32 v9, v7, v8
    s_and_b32 s64, s3, 3
    s_lshl_b32 s64, s64, 12
    v_lshlrev_b32 v10, 7, v6
    v_add_u32 v10, s64, v10
    v_lshl_add_u32 v16, v9, 4, v10
    v_xor_b32 v9, 4, v9
    v_lshl_add_u32 v17, v9, 4, v10
    v_add_u32 v18, 0x10000, v16
    v_add_u32 v19, 0x10000, v17
    ''')
    a('''
    v_bfe_u32 v8, v1, 2, 2
    v_and_b32 v9, 3, v1
    v_lshrrev_b32 v10, 1, v8
    v_and_b32 v13, 1, v7
    v_lshl_or_b32 v10, v13, 1, v10
    v_lshl_add_u32 v13, v7, 3, v8
    v_lshlrev_b32 v13, 7, v13
    v_lshl_add_u32 v13, v9, 3, v13
    s_lshr_b32 s64, s3, 2
    s_lshl_b32 s64, s64, 12
    s_add_u32 s64, s64, 16384
    v_add_u32 v13, s64, v13
    ''')
    for nt in range(4):
        a(f'''
        v_xor_b32 v14, {nt}, v10
        v_lshl_add_u32 v{20+nt}, v14, 5, v13
        v_add_u32 v{24+nt}, 0x10000, v{20+nt}
        ''')
    a('''
    v_lshlrev_b32 v28, 4, v1
    s_lshl_b32 s72, s60, 7
    s_lshl_b32 s64, s61, 4
    s_add_u32 s72, s72, s64
    s_lshl_b32 s64, s3, 1
    s_add_u32 s72, s72, s64
    ''')
    for i in range(32): a(f'v_mov_b32 v{ACC+i}, 0')

    def xaddr(sg, ksl):
        sl = sg % G1_R
        return (16 + ksl + (2 if sl >= 2 else 0), (sl % 2) * G1_SLOT)
    def waddr(sg, nt):
        sl = sg % G1_R
        return (20 + nt + (4 if sl >= 2 else 0), (sl % 2) * G1_SLOT)
    nB = 0
    for sg in range(10):
        vm.wait_for(a, lambda t: t == ('A', sg))
        ST('w%d' % sg)
        a('s_barrier')
        if sg + D < 10: issue_A(sg + D)
        else:
            issue_B(nB); nB += 1
        for ksl in range(2):
            va, off = xaddr(sg, ksl)
            for t in range(2):
                r0 = xf(2*sg + ksl, t)
                a(f'ds_read_b128 v[{r0}:{r0+3}], v{va} offset:{off + 2048*t}')
            for nt in range(4):
                va, off = waddr(sg, nt)
                W = WFB[ksl]
                for u in range(2):
                    a(f'ds_read_b64_tr_b16 v[{W+nt*4+2*u}:{W+nt*4+2*u+1}], v{va} offset:{off + ksl*8192 + 512*u}')
        for ksl in range(2):
            W = WFB[ksl]
            for nt in range(4):
                rem = (8 - 2*(nt+1)) + (10 if ksl == 0 else 0)
                a(f's_waitcnt lgkmcnt({min(rem,15)})')
                for t in range(2):
                    x = xf(2*sg + ksl, t)
                    a(f'v_mfma_f32_16x16x32_bf16 v[{acc(t,nt)}:{acc(t,nt)+3}], v[{W+nt*4}:{W+nt*4+3}], v[{x}:{x+3}], v[{acc(t,nt)}:{acc(t,nt)+3}]')
    ST('A-done')
    a('''
    s_lshl_b32 s64, s61, 5
    s_mul_i32 s73, s64, 0xcccd
    s_lshr_b32 s73, s73, 18
    s_lshr_b32 s65, s3, 2
    s_lshl_b32 s65, s65, 4
    s_add_u32 s64, s64, s65
    s_and_b32 s65, s3, 3
    s_lshl_b32 s65, s65, 5
    v_add_u32 v8, s65, v6
    v_mul_u32_u24 v8, 40, v8
    ''')
    for nt in range(4):
        a(f'''
        v_add_u32 v9, s64, v7
        v_add_u32 v9, {4*nt}, v9
        v_mul_u32_u24 v10, 0xcccd, v9
        v_lshrrev_b32 v10, 18, v10
        v_mul_u32_u24 v13, 5, v10
        v_sub_u32 v9, v9, v13
        v_cmp_gt_u32 vcc, 32, v10
        v_mov_b32 v13, 1.0
        v_mov_b32 v14, {f32bits(CQ):#x}
        v_cndmask_b32 v{24+nt}, v13, v14, vcc
        v_subrev_u32 v10, s73, v10
        v_mul_u32_u24 v13, 0x5556, v10
        v_lshrrev_b32 v13, 16, v13
        v_mul_u32_u24 v14, 3, v13
        v_sub_u32 v10, v10, v14
        v_lshlrev_b32 v13, 15, v13
        v_mul_u32_u24 v10, 5120, v10
        v_add_u32 v13, v13, v10
        v_lshl_add_u32 v13, v9, 3, v13
        v_add_u32 v{20+nt}, v13, v8
        ''')
    a(f's_mul_i32 s74, s72, 1280')
    for rr in range(2):
        a(f'buffer_load_dwordx4 v[{32+8*rr}:{35+8*rr}], v28, s[{S_X}:{S_X+3}], s74 offen offset:{0}' if rr == 0 else
          f'buffer_load_dwordx4 v[{32+8*rr}:{35+8*rr}], v28, s[{S_X}:{S_X+3}], s75 offen'); vm.issue(('G',))
        if rr == 0:
            a(f'buffer_load_dwordx4 v[36:39], v28, s[{S_X}:{S_X+3}], s74 offen offset:1024'); vm.issue(('G',))
            a('s_add_u32 s75, s74, 1280')
        else:
            a(f'buffer_load_dwordx4 v[44:47], v28, s[{S_X}:{S_X+3}], s75 offen offset:1024'); vm.issue(('G',))
    a(f'buffer_load_dwordx4 v[48:51], v28, s[{S_GW}:{S_GW+3}], 0 offen'); vm.issue(('G',))
    a(f'buffer_load_dwordx4 v[52:55], v28, s[{S_GW}:{S_GW+3}], 0 offen offset:1024'); vm.issue(('G',))
    a('s_barrier')
    for t in range(2):
        for nt in range(4):
            A = acc(t, nt)
            for r in range(4): a(f'v_mul_f32 v{A+r}, v{A+r}, v{24+nt}')
            a(f'v_cvt_pk_bf16_f32 v{A}, v{A}, v{A+1}')
            a(f'v_cvt_pk_bf16_f32 v{A+1}, v{A+2}, v{A+3}')
            a(f'ds_write_b64 v{20+nt}, v[{A}:{A+1}] offset:{640*t}')
    a('s_waitcnt lgkmcnt(0)')
    a('s_barrier')
    ST('epiA-bar2')
    a(f'''
    s_lshl_b32 s64, s61, 5
    s_mul_i32 s65, s73, 5
    s_sub_u32 s65, s64, s65
    s_mul_i32 s64, s73, 81920
    s_mul_i32 s63, s60, 5120
    s_add_u32 s64, s64, s63
    s_add_u32 s64, s64, {QKV_OFF}
    ''')
    for i in range(4):
        a(f'''
        v_add_u32 v8, {512*i}, v0
        v_mul_u32_u24 v9, 0xcccd, v8
        v_lshrrev_b32 v9, 24, v9
        v_mul_u32_u24 v10, 320, v9
        v_sub_u32 v10, v8, v10
        v_add_u32 v9, 1, v9
        v_lshlrev_b32 v10, 4, v10
        v_mul_u32_u24 v13, 0x5556, v9
        v_lshrrev_b32 v13, 16, v13
        v_mul_u32_u24 v14, 3, v13
        v_sub_u32 v14, v9, v14
        v_lshlrev_b32 v13, 15, v13
        v_mul_u32_u24 v14, 5120, v14
        v_add3_u32 v13, v13, v14, v10
        ds_read_b128 v[{64+4*i}:{67+4*i}], v13
        s_mov_b32 s63, 81920
        v_mul_lo_u32 v9, v9, s63
        v_add_u32 v{16+i}, v9, v10
        ''')
    a('''
    v_cmp_le_u32 vcc, 64, v0
    v_mov_b32 v8, 0x7fffff00
    v_cndmask_b32 v19, v19, v8, vcc
    ''')
    k = 0
    for hsl in (0, 6, 7):
        ldsb = (hsl // 3) * 32768 + (hsl % 3) * 5120
        for i in range(2):
            a(f'''
            v_add_u32 v8, {512*i}, v0
            v_mul_u32_u24 v9, 0xcccd, v8
            v_lshrrev_b32 v9, 18, v9
            v_mul_u32_u24 v9, 5, v9
            v_sub_u32 v9, v8, v9
            v_lshlrev_b32 v10, 3, v8
            v_add_u32 v13, {ldsb}, v10
            ds_read_b64 v[{80+2*k}:{81+2*k}], v13
            v_add_u32 v{20+k}, {hsl*81920}, v10
            ''')
            if hsl == 0: a('v_cmp_le_u32 vcc, s65, v9')
            elif hsl == 6: a('s_add_u32 s63, s65, 2\nv_cmp_gt_u32 vcc, s63, v9')
            else: a('s_sub_i32 s63, s65, 3\nv_cmp_gt_i32 vcc, s63, v9')
            a(f'''
            v_mov_b32 v13, 0x7fffff00
            v_cndmask_b32 v{20+k}, v13, v{20+k}, vcc
            ''')
            if i == 1:
                a(f'''
                v_cmp_le_u32 vcc, 128, v0
                v_cndmask_b32 v{20+k}, v{20+k}, v13, vcc
                ''')
            k += 1
    for i in range(4):
        a(f's_waitcnt lgkmcnt({min(15, 9-i)})')
        a(f'buffer_store_dwordx4 v[{64+4*i}:{67+4*i}], v{16+i}, s[{S_WS}:{S_WS+3}], s64 offen {st_flags}'); vm.issue(('ST',))
    for k in range(6):
        a(f's_waitcnt lgkmcnt({5-k})')
        a(f'buffer_store_dwordx2 v[{80+2*k}:{81+2*k}], v{20+k}, s[{S_WS}:{S_WS+3}], s64 offen {st_flags}'); vm.issue(('ST',))
    vm.wait_for(a, lambda t: t == ('G',))
    for rr in range(2):
        a('v_mov_b32 v8, 0')
        for half in range(2):
            for d in range(4):
                xv = 32 + 8*rr + 4*half + d; gv = 48 + 4*half + d
                a(f'''
                v_lshlrev_b32 v9, 16, v{xv}
                v_lshlrev_b32 v10, 16, v{gv}
                v_fmac_f32 v8, v9, v10
                v_and_b32 v9, 0xffff0000, v{xv}
                v_and_b32 v10, 0xffff0000, v{gv}
                v_fmac_f32 v8, v9, v10
                ''')
        for x in (0x041F, 0x081F, 0x101F, 0x201F, 0x401F):
            a(f'''
            ds_swizzle_b32 v9, v8 offset:{x:#x}
            s_waitcnt lgkmcnt(0)
            v_add_f32 v8, v8, v9
            ''')
        a(f'''
        v_readlane_b32 s63, v8, 32
        v_readlane_b32 s64, v8, 0
        v_mov_b32 v8, s63
        v_add_f32 v8, s64, v8
        v_mul_f32 v8, {f32bits(-math.log2(math.e)):#x}, v8
        v_exp_f32 v8, v8
        v_add_f32 v8, 1.0, v8
        v_rcp_f32 v{13+rr}, v8
        ''')
    a(f'''
    v_mov_b32 v9, 0
    v_mov_b32 v10, 0x7fffff00
    s_cmp_lt_u32 s61, 8
    s_cselect_b32 s63, 0, 0x7ff00000
    s_lshl_b32 s64, s72, 2
    s_add_u32 s64, s64, {G_OFF}
    s_add_u32 s64, s64, s63
    buffer_store_dword v13, v9, s[{S_WS}:{S_WS+3}], s64 offen {st_flags}
    buffer_store_dword v14, v9, s[{S_WS}:{S_WS+3}], s64 offen offset:4 {st_flags}
    '''); vm.issue(('ST',)); vm.issue(('ST',))
    if after_A: after_A(a, vm)
    ST('epiA-done')
    a(f'''
    s_cmp_ge_u32 s62, 6
    s_cbranch_scc1 L_G1SKIP_{nm}
    ''')
    a('''
    v_bfe_u32 v8, v1, 2, 2
    v_and_b32 v9, 3, v1
    v_lshrrev_b32 v10, 1, v8
    v_and_b32 v13, 1, v7
    v_lshl_or_b32 v10, v13, 1, v10
    v_lshl_add_u32 v13, v7, 3, v8
    v_lshlrev_b32 v13, 7, v13
    v_lshl_add_u32 v13, v9, 3, v13
    s_lshr_b32 s64, s3, 2
    s_lshl_b32 s64, s64, 12
    s_add_u32 s64, s64, 16384
    v_add_u32 v13, s64, v13
    ''')
    for nt in range(4):
        a(f'''
        v_xor_b32 v14, {nt}, v10
        v_lshl_add_u32 v{20+nt}, v14, 5, v13
        v_add_u32 v{24+nt}, 0x10000, v{20+nt}
        ''')
    for i in range(32): a(f'v_mov_b32 v{ACC+i}, 0')
    for sb in range(10):
        sg = 10 + sb
        vm.wait_for(a, lambda t: t == ('B', sb))
        a('s_barrier')
        if nB < 10: issue_B(nB); nB += 1
        for ksl in range(2):
            for nt in range(4):
                va, off = waddr(sg, nt)
                W = WFB[ksl]
                for u in range(2):
                    a(f'ds_read_b64_tr_b16 v[{W+nt*4+2*u}:{W+nt*4+2*u+1}], v{va} offset:{off + ksl*8192 + 512*u}')
        for ksl in range(2):
            W = WFB[ksl]
            for nt in range(4):
                rem = (8 - 2*(nt+1)) + (8 if ksl == 0 else 0)
                a(f's_waitcnt lgkmcnt({min(rem,15)})')
                for t in range(2):
                    x = xf(2*sb + ksl, t)
                    a(f'v_mfma_f32_16x16x32_bf16 v[{acc(t,nt)}:{acc(t,nt)+3}], v[{W+nt*4}:{W+nt*4+3}], v[{x}:{x+3}], v[{acc(t,nt)}:{acc(t,nt)+3}]')
    ST('B-done')
    a(f'''
    s_lshl_b32 s64, s60, 2
    s_and_b32 s65, s3, 3
    s_add_u32 s64, s64, s65
    s_mul_i32 s64, s64, 96
    s_lshl_b32 s65, s71, 3
    s_add_u32 s64, s64, s65
    s_lshr_b32 s65, s3, 2
    s_lshl_b32 s65, s65, 2
    s_add_u32 s64, s64, s65
    s_lshl_b32 s64, s64, 10
    s_add_u32 s64, s64, {H_OFF}
    ''')
    for nt in range(4):
        D0 = 32 + 4*nt
        for t in range(2):
            A = acc(t, nt)
            for r in range(4): a(f'v_max_f32 v{A+r}, 0, v{A+r}')
            a(f'v_cvt_pk_bf16_f32 v{D0+2*t}, v{A}, v{A+1}')
            a(f'v_cvt_pk_bf16_f32 v{D0+2*t+1}, v{A+2}, v{A+3}')
        a(f'buffer_store_dwordx4 v[{D0}:{D0+3}], v28, s[{S_WS}:{S_WS+3}], s64 offen offset:{1024*nt} {st_flags}'); vm.issue(('ST',))
    if after_B: after_B(a, vm)
    if stamps:
        a('s_waitcnt vmcnt(0)')
        ST('end')
        ST.real('rt1')
        ST.flush(2)
        print(ST.names, file=sys.stderr)
    a.label(f'L_G1SKIP_{nm}')
    return vm
```

```python
import sys
from asm import *
from gen1 import VM, S_X, S_WQKV, S_W1, S_W2, S_WO, S_GW, S_OUT, S_WS, QKV_OFF, H_OFF, O_OFF, G_OFF
from stamp import Stamper

G2_D = 3
G2_R = G2_D + 1
G2_LDS = 4 * 24 * 1024

def gemm2(a, ld_flags='', lds_base=0, stamps=False, waitfn=None):
    vm = VM()
    ST = Stamper(a, stamps, base=76, maxn=22)
    ST('start')
    nm = a.name
    D, R = G2_D, G2_R
    ACC = 160
    ACT = 64
    WF = [32, 48]
    def acc(mt, nt): return ACC + (mt * 4 + nt) * 4
    def act(step, i): return ACT + (step % (D + 1)) * 24 + 4 * i
    a(f'''
    s_and_b32 s62, s2, 7
    s_lshr_b32 s63, s2, 3
    s_mul_i32 s64, s63, 52
    s_lshr_b32 s64, s64, 8
    s_mul_i32 s65, s64, 5
    s_sub_u32 s65, s63, s65
    s_and_b32 s61, s62, 1
    s_mul_i32 s61, s61, 5
    s_add_u32 s61, s61, s65
    s_lshr_b32 s62, s62, 1
    s_mul_i32 s60, s62, 6
    s_cmp_eq_u32 s62, 3
    s_cselect_b32 s65, 17, s60
    s_mov_b32 s60, s65
    s_cmp_ge_u32 s62, 2
    s_cselect_b32 s65, 5, 6
    s_cmp_ge_u32 s64, s65
    s_cbranch_scc1 L_G2SKIP_{nm}
    s_add_u32 s60, s60, s64
    v_and_b32 v2, 15, v1
    v_lshrrev_b32 v3, 4, v1
    v_lshlrev_b32 v4, 4, v1
    ''')
    a('''
    v_lshrrev_b32 v5, 3, v1
    v_and_b32 v6, 7, v1
    v_lshlrev_b32 v7, 1, v3
    v_xor_b32 v6, v6, v7
    v_lshlrev_b32 v6, 4, v6
    ''')
    for b in range(4):
        a(f'''
        v_add_u32 v7, {8*b}, v5
        v_mul_u32_u24 v{10+b}, 1280, v7
        v_add_u32 v{10+b}, v{10+b}, v6
        v_bfe_u32 v8, v7, 2, 2
        v_lshlrev_b32 v8, 3, v8
        v_lshrrev_b32 v9, 4, v7
        v_lshl_add_u32 v8, v9, 2, v8
        v_and_b32 v9, 3, v7
        v_add_u32 v8, v8, v9
        v_mul_u32_u24 v{14+b}, 1280, v8
        v_add_u32 v{14+b}, v{14+b}, v6
        ''')
    a(f'''
    s_mul_i32 s65, s3, {R*4096}
    s_add_u32 s65, s65, {lds_base}
    s_mul_i32 s66, s60, 288
    s_mul_i32 s64, s3, 24
    s_add_u32 s66, s66, s64
    s_lshl_b32 s66, s66, 10
    s_add_u32 s66, s66, {H_OFF}
    s_add_u32 s67, s66, 98304
    s_add_u32 s68, s67, 98304
    s_mul_i32 s69, s3, {12*40960}
    s_lshl_b32 s64, s61, 7
    s_add_u32 s69, s69, s64
    s_mul_i32 s70, s3, {5*40960}
    s_add_u32 s70, s70, s64
    s_mul_i32 s71, s60, {6*80*256}
    s_mul_i32 s64, s3, {5*1024}
    s_add_u32 s71, s71, s64
    s_add_u32 s71, s71, {O_OFF}
    ''')
    for mt in range(6): a(f'v_add_u32 v{18+mt}, {20480*mt}, v4')
    NS = 17
    def issue(step):
        slot = step % R
        if step < 12:
            for aa in range(3):
                for u in range(2):
                    r0 = act(step, 2*aa + u)
                    a(f'buffer_load_dwordx4 v[{r0}:{r0+3}], v4, s[{S_WS}:{S_WS+3}], s{66+aa} offen offset:{1024*u} {ld_flags}'); vm.issue(('S', step))
            for b in range(4):
                a(f's_add_u32 m0, s65, {slot*4096 + b*1024}')
                a(f'buffer_load_dwordx4 v{10+b}, s[{S_W2}:{S_W2+3}], s69 offen lds'); vm.issue(('S', step))
            a('s_add_u32 s66, s66, 2048\ns_add_u32 s67, s67, 2048\ns_add_u32 s68, s68, 2048\ns_add_u32 s69, s69, 40960')
        else:
            so = step - 12
            for mt in range(6):
                r0 = act(step, mt)
                a(f'buffer_load_dwordx4 v[{r0}:{r0+3}], v{18+mt}, s[{S_WS}:{S_WS+3}], s71 offen {ld_flags}'); vm.issue(('S', step))
            for b in range(4):
                a(f's_add_u32 m0, s65, {slot*4096 + b*1024}')
                a(f'buffer_load_dwordx4 v{14+b}, s[{S_WO}:{S_WO+3}], s70 offen lds'); vm.issue(('S', step))
            a('s_add_u32 s70, s70, 40960\ns_add_u32 s71, s71, 1024')
    if waitfn:
        a('''
        s_mul_i32 s72, s60, 96
        s_lshr_b32 s72, s72, 7
        s_min_u32 s72, s72, 14
        s_lshl_b32 s72, s72, 4
        ''')
        waitfn(a, 's72', 8, 2, 'H', 5, 6)
    for st in range(D): issue(st)
    ST('issued')
    a(f'''
    v_bfe_u32 v5, v1, 2, 2
    v_and_b32 v6, 3, v1
    v_lshl_add_u32 v7, v3, 2, v5
    v_bfe_u32 v8, v7, 1, 2
    v_lshlrev_b32 v7, 7, v7
    v_lshl_add_u32 v7, v6, 3, v7
    v_add_u32 v7, s65, v7
    ''')
    for nt in range(4):
        a(f'''
        v_xor_b32 v9, {nt}, v8
        v_lshl_add_u32 v{24+nt}, v9, 5, v7
        ''')
    a(f'''
    v_lshlrev_b32 v5, 2, v2
    s_mul_i32 s64, s60, 384
    s_add_u32 s64, s64, {G_OFF}
    ''')
    GR = [28, 29, 30, 31, 8, 9]
    for mt in range(6):
        a(f'buffer_load_dword v{GR[mt]}, v5, s[{S_WS}:{S_WS+3}], s64 offen offset:{64*mt} {ld_flags}'); vm.issue(('G',))
    for i in range(96): a(f'v_mov_b32 v{ACC+i}, 0')
    def trreads(step):
        W = WF[step % 2]; slot = step % R
        for nt in range(4):
            for u in range(2):
                a(f'ds_read_b64_tr_b16 v[{W+4*nt+2*u}:{W+4*nt+2*u+1}], v{24+nt} offset:{slot*4096 + u*2048}')
    vm.wait_for(a, lambda t: t == ('S', 0))
    trreads(0)
    for st in range(NS):
        ST('s%d' % st)
        if waitfn and st + D == 12:
            waitfn(a, 's72', 8, 3, 'O', 5, 6)
        if st + D < NS: issue(st + D)
        nxt = st + 1 < NS
        if nxt:
            vm.wait_for(a, lambda t: t == ('S', st + 1))
            trreads(st + 1)
        if st < 12:
            for aa in range(3):
                x0 = act(st, 2*aa); x1 = act(st, 2*aa + 1)
                a(f'v_swap_b32 v{x0+2}, v{x1}')
                a(f'v_swap_b32 v{x0+3}, v{x1+1}')
        if st == 12:
            for mt in range(6):
                a(f'v_sub_f32 v{GR[mt]}, 1.0, v{GR[mt]}')
            for mt in range(6):
                for nt in range(4):
                    for r in range(4): a(f'v_mul_f32 v{acc(mt,nt)+r}, v{acc(mt,nt)+r}, v{GR[mt]}')
        W = WF[st % 2]
        for nt in range(4):
            rem = (8 - 2*(nt+1)) + (8 if nxt else 0)
            a(f's_waitcnt lgkmcnt({min(rem, 15)})')
            for mt in range(6):
                x = act(st, mt)
                a(f'v_mfma_f32_16x16x32_bf16 v[{acc(mt,nt)}:{acc(mt,nt)+3}], v[{W+4*nt}:{W+4*nt+3}], v[{x}:{x+3}], v[{acc(mt,nt)}:{acc(mt,nt)+3}]')
    ST('loopdone')
    a('s_barrier')
    a(f'v_add_u32 v5, {lds_base}, v4')
    a(f'v_add_u32 v6, {lds_base + 49152}, v4')
    for w in range(4):
        a(f's_cmp_eq_u32 s3, {w}')
        a(f's_cbranch_scc0 L_red{w}_{nm}')
        for nt in range(4):
            if nt == w: continue
            for mt in range(6):
                off = ((nt * 4 + w) * 6 + mt) * 1024
                va, o2 = (5, off) if off < 49152 else (6, off - 49152)
                a(f'ds_write_b128 v{va}, v[{acc(mt,nt)}:{acc(mt,nt)+3}] offset:{o2}')
        a('s_waitcnt lgkmcnt(0)')
        a('s_barrier')
        k = 0
        order = []
        for src in range(4):
            if src == w: continue
            for mt in range(6):
                off = ((w * 4 + src) * 6 + mt) * 1024
                va, o2 = (5, off) if off < 49152 else (6, off - 49152)
                a(f'ds_read_b128 v[{64+4*k}:{67+4*k}], v{va} offset:{o2}'); order.append(mt); k += 1
        for k, mt in enumerate(order):
            a(f's_waitcnt lgkmcnt({min(17-k, 15)})')
            first = k < 6
            for r in range(4):
                src_r = acc(mt, w) + r if first else 136 + 4*mt + r
                a(f'v_add_f32 v{136+4*mt+r}, v{src_r}, v{64+4*k+r}')
        a(f's_branch L_redone_{nm}')
        a('s_nop 7')
        a.label(f'L_red{w}_{nm}')
    a.label(f'L_redone_{nm}')
    a(f'''
    s_mul_i32 s64, s60, {96*1280}
    s_lshl_b32 s71, s61, 7
    s_add_u32 s64, s64, s71
    s_lshl_b32 s71, s3, 5
    s_add_u32 s64, s64, s71
    v_mul_u32_u24 v5, 1280, v2
    v_lshl_add_u32 v5, v3, 3, v5
    ''')
    for mt in range(6):
        A = 136 + 4*mt
        a(f'v_cvt_pk_bf16_f32 v{A}, v{A}, v{A+1}')
        a(f'v_cvt_pk_bf16_f32 v{A+1}, v{A+2}, v{A+3}')
        a(f'v_add_u32 v6, {20480*mt}, v5')
        a(f'buffer_store_dwordx2 v[{A}:{A+1}], v6, s[{S_OUT}:{S_OUT+3}], s64 offen')
    if stamps:
        a('s_waitcnt vmcnt(0)')
        ST('end')
        ST.flush(2)
        print(ST.names, file=sys.stderr)
    a.label(f'L_G2SKIP_{nm}')
    return vm
```

```python
import sys, math
from asm import *

KN = "gated_mix__sliding_block__dense_activation_relu__prompt"
QKV_OFF = 0
H_OFF = 0x800000
O_OFF = 0x1000000
G_OFF = 0x1400000
FLAG_OFF = 0x1500000
WS_SIZE = 0x1600000
CQ = math.log2(math.e) / math.sqrt(20.0)

def f32bits(x):
    import struct
    return struct.unpack('<I', struct.pack('<f', x))[0]

S_X, S_WQKV, S_W1, S_W2, S_WO, S_GW, S_OUT, S_WS = 8, 12, 16, 20, 24, 28, 32, 36

class VM:
    def __init__(self): self.ops = []
    def issue(self, tag): self.ops.append(tag)
    def wait_for(self, a, pred):
        last = -1
        for i, t in enumerate(self.ops):
            if pred(t): last = i
        assert last >= 0
        n = len(self.ops) - 1 - last
        assert n <= 63, n
        a('s_waitcnt vmcnt(%d)' % n)

def prologue(a, nwg=256):
    a(f'''
    s_cmp_ge_u32 s2, {nwg}
    s_cbranch_scc1 L_END_{a.name}
    s_load_dwordx4 s[40:43], s[0:1], 0
    s_load_dwordx2 s[44:45], s[0:1], 16
    s_load_dwordx4 s[48:51], s[0:1], 32
    s_load_dwordx4 s[52:55], s[0:1], 48
    s_load_dwordx4 s[56:59], s[0:1], 64
    v_and_b32 v1, 63, v0
    v_lshrrev_b32 v2, 6, v0
    s_nop 0
    v_readfirstlane_b32 s3, v2
    s_waitcnt lgkmcnt(0)
    ''')
    def srd(d, lo, size):
        a(f'''
        s_mov_b32 s{d}, s{lo}
        s_and_b32 s{d+1}, s{lo+1}, 0xffff
        s_mov_b32 s{d+2}, {size}
        s_mov_b32 s{d+3}, 0x00020000
        ''')
    srd(S_X, 40, 2048 * 1280)
    srd(S_WQKV, 42, 640 * 3840)
    srd(S_WO, 44, 640 * 1280)
    srd(S_W1, 48, 640 * 3072)
    srd(S_W2, 50, 1536 * 1280)
    srd(S_GW, 52, 1280)
    srd(S_OUT, 54, 2048 * 1280)
    srd(S_WS, 58, WS_SIZE)

def kernel_wrap(name, body_text, vgpr, sgpr=96):
    return f'''.globl {name}
.p2align 8
.type {name},@function
{name}:
{body_text}
'''

def kd(name, vgpr, sgpr=96):
    return f'''.amdhsa_kernel {name}
  .amdhsa_next_free_vgpr {vgpr}
  .amdhsa_next_free_sgpr {sgpr}
  .amdhsa_accum_offset {vgpr}
  .amdhsa_group_segment_fixed_size 0
  .amdhsa_kernarg_size 80
  .amdhsa_user_sgpr_count 2
  .amdhsa_user_sgpr_kernarg_segment_ptr 1
  .amdhsa_system_sgpr_workgroup_id_x 1
.end_amdhsa_kernel
'''

WA_BASE = 0
WB_BASE = 81920
K1_LDS = WB_BASE + 65536

def gemm1(a, st_flags='', stamps=False):
    from stamp import Stamper
    ST = Stamper(a, stamps, base=74, maxn=22)
    ST('start')
    XF = 96; ACC = 64; WF0 = 32; WF1 = 48
    def xf(s, t): return XF + (s * 2 + t) * 4
    def acc(t, nt): return ACC + (t * 4 + nt) * 4
    vm = VM()
    a('''
    s_and_b32 s62, s2, 7
    s_lshr_b32 s63, s2, 3
    s_lshr_b32 s60, s62, 2
    s_lshl_b32 s60, s60, 2
    s_lshr_b32 s64, s63, 3
    s_add_u32 s60, s60, s64
    s_and_b32 s61, s62, 3
    s_lshl_b32 s61, s61, 3
    s_and_b32 s64, s63, 7
    s_add_u32 s61, s61, s64
    ''')
    a('''
    v_and_b32 v2, 15, v1
    v_lshrrev_b32 v3, 4, v1
    ''')
    a('''
    v_mul_u32_u24 v4, 1280, v2
    v_lshl_add_u32 v4, v3, 4, v4
    s_lshl_b32 s65, s60, 8
    s_lshl_b32 s64, s3, 5
    s_add_u32 s65, s65, s64
    s_mul_i32 s65, s65, 1280
    s_add_u32 s66, s65, 20480
    ''')
    a('''
    v_lshrrev_b32 v6, 3, v1
    v_and_b32 v7, 2, v6
    s_and_b32 s64, s3, 1
    s_lshl_b32 s64, s64, 2
    v_or_b32 v7, s64, v7
    v_and_b32 v8, 7, v1
    v_xor_b32 v8, v8, v7
    s_and_b32 s67, s3, 3
    s_lshl_b32 s64, s67, 3
    v_add_u32 v6, s64, v6
    v_mul_u32_u24 v5, 3840, v6
    v_lshl_add_u32 v5, v8, 4, v5
    ''')
    a(f'''
    s_lshr_b32 s64, s3, 2
    s_mul_i32 s68, s64, 122880
    s_mul_i32 s70, s61, 120
    s_add_u32 s68, s68, s70
    s_lshl_b32 s69, s64, 12
    s_lshl_b32 s70, s67, 10
    s_add_u32 s69, s69, s70
    s_add_u32 s69, s69, {WA_BASE}
    ''')
    for kp in range(3):
        a(f'''
        s_add_u32 s64, s3, {2*kp}
        s_mul_i32 s70, s64, 171
        s_lshr_b32 s70, s70, 9
        s_mul_i32 s70, s70, 3
        s_sub_u32 s64, s64, s70
        s_lshl_b32 s64, s64, 6
        v_add_u32 v12, s64, v1
        v_mul_u32_u24 v13, 171, v12
        v_lshrrev_b32 v13, 10, v13
        v_mul_u32_u24 v14, 6, v13
        v_sub_u32 v14, v12, v14
        v_bfe_u32 v15, v13, 2, 2
        v_lshlrev_b32 v15, 3, v15
        v_lshrrev_b32 v16, 4, v13
        v_lshl_add_u32 v15, v16, 2, v15
        v_and_b32 v16, 3, v13
        v_add_u32 v15, v15, v16
        v_mul_u32_u24 v{9+kp}, 3072, v15
        v_lshl_add_u32 v{9+kp}, v14, 4, v{9+kp}
        ''')
    a('''
    v_bfe_u32 v16, v1, 2, 2
    v_and_b32 v17, 3, v1
    v_lshrrev_b32 v18, 1, v16
    v_and_b32 v19, 1, v3
    v_lshl_or_b32 v18, v19, 1, v18
    v_lshl_add_u32 v19, v3, 3, v16
    v_lshlrev_b32 v19, 7, v19
    v_lshl_add_u32 v19, v17, 3, v19
    ''')
    for nt in range(4):
        a(f'''
        v_xor_b32 v20, {nt}, v18
        v_lshl_add_u32 v{12+nt}, v20, 5, v19
        ''')
    a(f'''
    v_lshl_add_u32 v20, v3, 2, v16
    v_mul_u32_u24 v21, 96, v20
    v_lshl_add_u32 v21, v17, 3, v21
    v_add_u32 v21, {WB_BASE}, v21
    ''')
    a('''
    v_lshlrev_b32 v22, 4, v1
    s_lshl_b32 s71, s60, 8
    s_lshl_b32 s64, s61, 3
    s_add_u32 s71, s71, s64
    s_add_u32 s71, s71, s3
    s_mul_i32 s72, s71, 1280
    ''')
    for i in range(32): a(f'v_mov_b32 v{ACC+i}, 0')

    def issue_stage(sg):
        a(f's_mov_b32 m0, s69')
        a(f'buffer_load_dwordx4 v5, s[{S_WQKV}:{S_WQKV+3}], s68 offen lds'); vm.issue(('A', sg))
        a(f's_add_u32 s68, s68, 245760')
        a(f's_add_u32 s69, s69, 8192')
        for ks in (2*sg, 2*sg+1):
            for t in range(2):
                a(f'buffer_load_dwordx4 v[{xf(ks,t)}:{xf(ks,t)+3}], v4, s[{S_X}:{S_X+3}], s{65+t} offen offset:{64*ks}'); vm.issue(('A', sg))
    def issue_B(i):
        kp = i % 3
        a(f'''
        s_add_u32 s64, s3, {8*i}
        s_mul_i32 s70, s64, 171
        s_lshr_b32 s70, s70, 9
        s_mul_i32 s70, s70, 98304
        s_mul_i32 s73, s61, 96
        s_add_u32 s70, s70, s73
        s_lshl_b32 s64, s64, 10
        s_add_u32 m0, s64, {WB_BASE}
        s_nop 0
        buffer_load_dwordx4 v{9+kp}, s[{S_W1}:{S_W1+3}], s70 offen lds
        '''); vm.issue(('B', i))
    D = 3
    ST('pre-issue')
    for sg in range(D): issue_stage(sg)
    a(f'buffer_load_dwordx4 v[24:27], v22, s[{S_X}:{S_X+3}], s72 offen'); vm.issue(('G', 0))
    a(f'buffer_load_dwordx4 v[28:31], v22, s[{S_X}:{S_X+3}], s72 offen offset:1024'); vm.issue(('G', 0))
    GW = 128 + 96
    nB = 0
    for sg in range(10):
        vm.wait_for(a, lambda t: t == ('A', sg))
        ST('w%d' % sg)
        a('s_barrier')
        if sg + D < 10: issue_stage(sg + D)
        else:
            for _ in range(3):
                if nB < 8: issue_B(nB); nB += 1
        for h, ks in enumerate((2*sg, 2*sg+1)):
            WF = WF0 if h == 0 else WF1
            off = WA_BASE + (ks % 4) * 4096
            for nt in range(4):
                for u in range(2):
                    a(f'ds_read_b64_tr_b16 v[{WF+nt*4+2*u}:{WF+nt*4+2*u+1}], v{12+nt} offset:{off+512*u}')
        for h, ks in enumerate((2*sg, 2*sg+1)):
            WF = WF0 if h == 0 else WF1
            for nt in range(4):
                rem = (8 - 2*(nt+1)) + (8 if h == 0 else 0)
                a(f's_waitcnt lgkmcnt({min(rem,15)})')
                for t in range(2):
                    a(f'v_mfma_f32_16x16x32_bf16 v[{acc(t,nt)}:{acc(t,nt)+3}], v[{WF+nt*4}:{WF+nt*4+3}], v[{xf(ks,t)}:{xf(ks,t)+3}], v[{acc(t,nt)}:{acc(t,nt)+3}]')
        if sg % 2 == 1:
            for nt in range(4): a(f'v_add_u32 v{12+nt}, 16384, v{12+nt}')
    while nB < 8: issue_B(nB); nB += 1
    a(f'buffer_load_dwordx4 v[32:35], v22, s[{S_GW}:{S_GW+3}], 0 offen'); vm.issue(('G', 1))
    a(f'buffer_load_dwordx4 v[36:39], v22, s[{S_GW}:{S_GW+3}], 0 offen offset:1024'); vm.issue(('G', 1))
    for nt in range(4):
        a(f'''
        v_lshlrev_b32 v20, 2, v3
        v_add_u32 v20, {16*nt}, v20
        v_mul_u32_u24 v23, 13, v20
        v_lshrrev_b32 v23, 8, v23
        v_mul_u32_u24 v40, 20, v23
        v_sub_u32 v20, v20, v40
        v_mul_u32_u24 v40, 10240, v23
        v_lshl_add_u32 v40, v20, 1, v40
        s_lshl_b32 s64, s3, 5
        v_add_u32 v41, s64, v2
        v_mul_u32_u24 v41, 40, v41
        v_add_u32 v{12+nt}, v40, v41
        s_mul_i32 s64, s61, 3
        v_add_u32 v23, s64, v23
        v_cmp_gt_u32 vcc, 32, v23
        v_mov_b32 v40, 1.0
        v_mov_b32 v41, {f32bits(CQ):#x}
        v_cndmask_b32 v{16+nt}, v40, v41, vcc
        ''')
    ST('A-done')
    a('s_barrier')
    for t in range(2):
        for nt in range(4):
            A = acc(t, nt)
            for r in range(4): a(f'v_mul_f32 v{A+r}, v{A+r}, v{16+nt}')
            a(f'v_cvt_pk_bf16_f32 v{A}, v{A}, v{A+1}')
            a(f'v_cvt_pk_bf16_f32 v{A+1}, v{A+2}, v{A+3}')
            a(f'ds_write_b64 v{12+nt}, v[{A}:{A+1}] offset:{WA_BASE + 640*t}')
    vm.wait_for(a, lambda t: t[0] == 'G')
    a('v_mov_b32 v40, 0')
    for half in range(2):
        for d in range(4):
            xv = 24 + 4*half + d; gv = 32 + 4*half + d
            a(f'''
            v_lshlrev_b32 v41, 16, v{xv}
            v_lshlrev_b32 v42, 16, v{gv}
            v_fmac_f32 v40, v41, v42
            v_and_b32 v41, 0xffff0000, v{xv}
            v_and_b32 v42, 0xffff0000, v{gv}
            v_fmac_f32 v40, v41, v42
            ''')
    for x in (0x041F, 0x081F, 0x101F, 0x201F, 0x401F):
        a(f'''
        ds_swizzle_b32 v41, v40 offset:{x:#x}
        s_waitcnt lgkmcnt(0)
        v_add_f32 v40, v40, v41
        ''')
    a(f'''
    v_readlane_b32 s64, v40, 32
    v_readlane_b32 s70, v40, 0
    v_mov_b32 v40, s64
    v_add_f32 v40, s70, v40
    v_mul_f32 v40, {f32bits(-math.log2(math.e)):#x}, v40
    v_exp_f32 v40, v40
    v_add_f32 v40, 1.0, v40
    v_rcp_f32 v40, v40
    v_mov_b32 v41, 0
    s_lshl_b32 s64, s71, 2
    s_add_u32 s64, s64, {G_OFF}
    buffer_store_dword v40, v41, s[{S_WS}:{S_WS+3}], s64 offen {st_flags}
    '''); vm.issue(('ST', 'g'))
    a('s_waitcnt lgkmcnt(0)')
    a('s_barrier')
    ST('epiA-bar2')
    a(f'''
    s_mul_i32 s64, s61, 3
    s_mul_i32 s64, s64, 81920
    s_mul_i32 s70, s60, 10240
    s_add_u32 s64, s64, s70
    s_add_u32 s64, s64, {QKV_OFF}
    v_lshlrev_b32 v40, 4, v0
    ''')
    for i in range(4):
        a(f'ds_read_b128 v[{64+4*i}:{64+4*i+3}], v40 offset:{WA_BASE + 8192*i}')
    a(f'''
    v_add_u32 v42, 8192, v40
    v_cmp_le_u32 vcc, 128, v0
    v_add_u32 v43, {8192 + 71680}, v40
    v_cndmask_b32 v42, v42, v43, vcc
    v_add_u32 v43, {16384 + 71680}, v40
    v_cmp_le_u32 vcc, 256, v0
    v_add_u32 v44, {16384 + 2*71680}, v40
    v_cndmask_b32 v43, v43, v44, vcc
    v_add_u32 v44, {24576 + 2*71680}, v40
    v_cmp_le_u32 vcc, 384, v0
    v_mov_b32 v45, 0x7fffff00
    v_cndmask_b32 v44, v44, v45, vcc
    ''')
    adr = [40, 42, 43, 44]
    for i in range(4):
        a(f's_waitcnt lgkmcnt({3-i})')
        a(f'buffer_store_dwordx4 v[{64+4*i}:{64+4*i+3}], v{adr[i]}, s[{S_WS}:{S_WS+3}], s64 offen {st_flags}'); vm.issue(('ST', 'qkv'))
    ST('epiA-done')
    def accB(t, nt): return 80 + (t * 3 + nt) * 4
    def accB(t, nt): return 40 + (t * 3 + nt) * 4
    WB0 = 64 + 16; WB1 = WB0
    WBF = [24, 80]
    for i in range(24): a(f'v_mov_b32 v{40+i}, 0')
    def rdB(ks):
        W = WBF[ks % 2]
        for nt in range(3):
            for u in range(2):
                a(f'ds_read_b64_tr_b16 v[{W+nt*4+2*u}:{W+nt*4+2*u+1}], v21 offset:{ks*3072 + u*1536 + nt*32}')
    rdB(0)
    for ks in range(20):
        if ks + 1 < 20: rdB(ks + 1)
        W = WBF[ks % 2]
        for nt in range(3):
            rem = (6 - 2*(nt+1)) + (6 if ks + 1 < 20 else 0)
            a(f's_waitcnt lgkmcnt({rem})')
            for t in range(2):
                a(f'v_mfma_f32_16x16x32_bf16 v[{accB(t,nt)}:{accB(t,nt)+3}], v[{W+nt*4}:{W+nt*4+3}], v[{xf(ks,t)}:{xf(ks,t)+3}], v[{accB(t,nt)}:{accB(t,nt)+3}]')
    ST('B-done')
    a(f'''
    s_lshl_b32 s64, s60, 3
    s_add_u32 s64, s64, s3
    s_mul_i32 s64, s64, 96
    s_mul_i32 s70, s61, 3
    s_add_u32 s64, s64, s70
    s_lshl_b32 s64, s64, 10
    s_add_u32 s64, s64, {H_OFF}
    ''')
    for nt in range(3):
        D0 = 64 + 4*nt
        for t in range(2):
            A = accB(t, nt)
            for r in range(4): a(f'v_max_f32 v{A+r}, 0, v{A+r}')
            a(f'v_cvt_pk_bf16_f32 v{D0+2*t}, v{A}, v{A+1}')
            a(f'v_cvt_pk_bf16_f32 v{D0+2*t+1}, v{A+2}, v{A+3}')
        a(f'buffer_store_dwordx4 v[{D0}:{D0+3}], v22, s[{S_WS}:{S_WS+3}], s64 offen offset:{1024*nt} {st_flags}'); vm.issue(('ST', 'h'))
    if stamps:
        a('s_waitcnt vmcnt(0)')
        ST('end')
        ST.flush(2)
        print(ST.names, file=sys.stderr)
    return vm

def build():
    out = []
    out.append(f'''; generated by gen1.py
; @launch kernel=k1_kernel grid=(256,1,1) block=(512,1,1) lds={K1_LDS}
.amdgcn_target "amdgcn-amd-amdhsa--gfx950"
.text
''')
    a = Asm(); a.name = 'k1'
    prologue(a)
    gemm1(a, stamps=(len(sys.argv) > 2))
    a('s_waitcnt vmcnt(0)')
    a.label('L_END_k1')
    a('s_endpgm')
    a.finalize()
    out.append(kernel_wrap('k1_kernel', a.text(), 256))
    out.append('.section .rodata,"a"\n.p2align 6\n')
    out.append(kd('k1_kernel', 256, 102))
    return ''.join(out)

if __name__ == '__main__':
    open(sys.argv[1], 'w').write(build())
```

```python
from asm import *
from gen1 import *

K2_LDS = 83968 + 1024
OST = 73728

def attention(a, st_flags='', ld_flags='', role=None):
    vm = VM()
    KF = 32; Q0 = 104; Q1 = 108
    SBUF = [112, 128]; SC = 144; NEGM = 160; P = 176; P2 = 184; VFB = [192, 200]; O = 208; M8 = 224
    if role is None:
        a('''
        s_and_b32 s62, s2, 7
        s_lshr_b32 s63, s2, 3
        s_lshr_b32 s64, s63, 4
        s_lshl_b32 s60, s62, 1
        s_add_u32 s60, s60, s64
        s_and_b32 s61, s63, 15
        ''')
    else:
        a(f's_mov_b32 s60, {role[0]}\ns_mov_b32 s61, {role[1]}')
    for b in range(3):
        a(f'''
        v_add_u32 v5, {64*b}, v1
        v_mul_u32_u24 v6, 171, v5
        v_lshrrev_b32 v6, 9, v6
        v_mul_u32_u24 v7, 3, v6
        v_sub_u32 v7, v5, v7
        v_mul_u32_u24 v{2+b}, 40, v6
        v_lshl_add_u32 v{2+b}, v7, 4, v{2+b}
        ''')
    a(f'''
    s_lshr_b32 s64, s3, 1
    s_and_b32 s65, s3, 1
    s_lshr_b32 s66, s64, 1
    s_and_b32 s67, s64, 1
    s_lshl_b32 s68, s67, 5
    s_add_u32 s68, s68, 32
    s_lshl_b32 s69, s60, 1
    s_add_u32 s68, s68, s69
    s_add_u32 s68, s68, s66
    s_mul_i32 s68, s68, 81920
    s_add_u32 s68, s68, {QKV_OFF}
    s_lshl_b32 s69, s61, 7
    s_sub_i32 s69, s69, 256
    s_mul_i32 s70, s65, 192
    s_add_i32 s69, s69, s70
    s_mul_i32 s71, s64, 18432
    s_mul_i32 s70, s65, 9216
    s_add_u32 s71, s71, s70
    ''')
    for aa in range(3):
        a(f'''
        s_add_i32 s70, s69, {64*aa}
        s_mul_i32 s72, s70, 40
        s_add_u32 s72, s72, s68
        s_cmp_lt_i32 s70, 0
        s_cselect_b32 s72, 0x7ff00000, s72
        ''')
        for b in range(3):
            a(f'''
            s_add_u32 m0, s71, {(3*aa+b)*1024}
            s_nop 0
            buffer_load_dwordx4 v{2+b}, s[{S_WS}:{S_WS+3}], s72 offen {ld_flags} lds
            '''); vm.issue('KV')
    a(f'''
    s_lshr_b32 s72, s3, 2
    s_and_b32 s73, s3, 3
    s_lshl_b32 s74, s61, 7
    s_lshl_b32 s70, s73, 5
    s_add_u32 s74, s74, s70
    s_lshl_b32 s70, s60, 1
    s_add_u32 s70, s70, s72
    s_mul_i32 s70, s70, 81920
    s_add_u32 s70, s70, {QKV_OFF}
    v_and_b32 v5, 31, v1
    v_lshrrev_b32 v6, 5, v1
    v_add_u32 v7, s74, v5
    v_mul_u32_u24 v8, 40, v7
    v_lshl_add_u32 v9, v6, 4, v8
    v_add_u32 v10, 32, v8
    v_cmp_eq_u32 vcc, 0, v6
    v_mov_b32 v11, 0x7fffff00
    v_cndmask_b32 v10, v11, v10, vcc
    buffer_load_dwordx4 v[{Q0}:{Q0+3}], v9, s[{S_WS}:{S_WS+3}], s70 offen {ld_flags}
    buffer_load_dwordx2 v[{Q1}:{Q1+1}], v10, s[{S_WS}:{S_WS+3}], s70 offen {ld_flags}
    v_lshlrev_b32 v12, 2, v7
    s_mov_b32 s70, {G_OFF}
    buffer_load_dword v13, v12, s[{S_WS}:{S_WS+3}], s70 offen {ld_flags}
    v_mov_b32 v11, 0x3f80
    v_cndmask_b32 v{Q1+2}, 0, v11, vcc
    v_mov_b32 v{Q1+3}, 0
    ''')
    vm.issue('Q'); vm.issue('Q'); vm.issue('G')
    MS = [40 + 2*i for i in range(10)] + [76 + 2*i for i in range(6)]
    a('''
    v_lshlrev_b32 v14, 2, v6
    v_sub_u32 v14, v5, v14
    ''')
    for r in range(16):
        c = 8*(r >> 2) + (r & 3)
        a(f'v_cmp_le_i32 s[{MS[r]}:{MS[r]+1}], {c}, v14')
    a('v_mov_b32 v15, 0xffff')
    a('v_mov_b32 v16, 0xffff0000')
    for i in range(8):
        a(f'''
        v_cndmask_b32 v17, 0, v15, s[{MS[2*i]}:{MS[2*i]+1}]
        v_cndmask_b32 v18, 0, v16, s[{MS[2*i+1]}:{MS[2*i+1]+1}]
        v_or_b32 v{M8+i}, v17, v18
        ''')
    a('''
    s_lshr_b32 s75, s74, 5
    s_sub_i32 s75, 8, s75
    s_max_i32 s75, s75, 0
    ''')
    for kb in range(9):
        a(f'''
        s_cmp_gt_u32 s75, {kb}
        s_cselect_b32 s70, 0xf149, 0
        v_mov_b32 v{KF+8*kb+6}, s70
        v_mov_b32 v{KF+8*kb+7}, 0
        ''')
    a(f'''
    s_mul_i32 s70, s72, 36864
    s_mul_i32 s64, s73, 1536
    s_add_u32 s70, s70, s64
    v_mul_u32_u24 v19, 48, v5
    v_add_u32 v19, s70, v19
    v_add_u32 v20, 32, v19
    v_lshl_add_u32 v19, v6, 4, v19
    v_bfe_u32 v21, v1, 4, 1
    v_bfe_u32 v22, v1, 2, 2
    v_and_b32 v23, 3, v1
    v_lshl_add_u32 v22, v6, 2, v22
    v_mul_u32_u24 v22, 48, v22
    v_lshl_add_u32 v22, v21, 5, v22
    v_lshl_add_u32 v22, v23, 3, v22
    s_add_u32 s70, s70, 18432
    v_add_u32 v22, s70, v22
    ''')
    vm.wait_for(a, lambda t: t == 'KV')
    a(f'''
    s_cmp_eq_u32 s67, 0
    s_cbranch_scc1 L_nopatch_{a.name}
    v_mul_u32_u24 v24, 48, v1
    v_add_u32 v24, s71, v24
    v_mov_b32 v26, 0x3f80
    v_mov_b32 v27, 0
    ds_write_b64 v24, v[26:27] offset:40
    ds_write_b64 v24, v[26:27] offset:{40+64*48}
    ds_write_b64 v24, v[26:27] offset:{40+128*48}
    ''')
    a.label(f'L_nopatch_{a.name}')
    a('s_waitcnt lgkmcnt(0)')
    a('s_barrier')
    for kb in range(9):
        a(f'ds_read_b128 v[{KF+8*kb}:{KF+8*kb+3}], v19 offset:{kb*1536}')
        a(f'ds_read_b64 v[{KF+8*kb+4}:{KF+8*kb+5}], v20 offset:{kb*1536}')
    vm.wait_for(a, lambda t: t == 'Q')
    def smfma(dst, kb, c):
        a(f'v_mfma_f32_32x32x16_bf16 v[{dst}:{dst+15}], v[{KF+8*kb}:{KF+8*kb+3}], v[{Q0}:{Q0+3}], {c}')
        a(f'v_mfma_f32_32x32x16_bf16 v[{dst}:{dst+15}], v[{KF+8*kb+4}:{KF+8*kb+7}], v[{Q1}:{Q1+3}], v[{dst}:{dst+15}]')
    a('s_waitcnt lgkmcnt(0)')
    MX = 28
    def maxes(S, first):
        for i in range(8):
            if first and i == 0:
                a(f'v_max_f32 v{MX}, v{S}, v{S+1}')
            else:
                a(f'v_max3_f32 v{MX}, v{MX}, v{S+2*i}, v{S+2*i+1}')
    smfma(SBUF[0], 0, '0'); smfma(SBUF[1], 8, '0')
    smfma(SC, 1, '0')
    for r in range(16):
        a(f'v_cndmask_b32 v{SBUF[0]+r}, v{SBUF[0]+r}, v{SBUF[1]+r}, s[{MS[r]}:{MS[r]+1}]')
    smfma(SBUF[1], 2, '0')
    maxes(SBUF[0], True)
    order = [(SC, 1), (SBUF[1], 2)]
    bufs = [SBUF[0], SC, SBUF[1]]
    bufof = {1: SC, 2: SBUF[1]}
    rot = [SBUF[0], SC, SBUF[1]]
    for kb in range(3, 8): bufof[kb] = rot[(kb - 3) % 3]
    for kb in range(1, 8):
        if kb + 2 <= 7: smfma(bufof[kb + 2], kb + 2, '0')
        maxes(bufof[kb], False)
    a(f'''
    v_mov_b32 v29, v{MX}
    v_mov_b32 v30, v{MX}
    v_permlane32_swap_b32 v29, v30
    v_max_f32 v{MX}, v29, v30
    v_sub_f32 v{MX}, 0, v{MX}
    ''')
    for r in range(16): a(f'v_mov_b32 v{NEGM+r}, v{MX}')
    CN = f'v[{NEGM}:{NEGM+15}]'
    def vreads(kb, VF):
        for aa in range(2):
            for u in range(2):
                a(f'ds_read_b64_tr_b16 v[{VF+4*aa+2*u}:{VF+4*aa+2*u+1}], v22 offset:{kb*1536 + aa*768 + u*384}')
    def exps(S, Pd):
        for i in range(8):
            a(f'v_exp_f32 v{S+2*i}, v{S+2*i}')
            a(f'v_exp_f32 v{S+2*i+1}, v{S+2*i+1}')
            a(f'v_cvt_pk_bf16_f32 v{Pd+i}, v{S+2*i}, v{S+2*i+1}')
    def pv(VF, Pd, first=False):
        for aa in range(2):
            c = '0' if (first and aa == 0) else f'v[{O}:{O+15}]'
            a(f'v_mfma_f32_32x32x16_bf16 v[{O}:{O+15}], v[{VF+4*aa}:{VF+4*aa+3}], v[{Pd+4*aa}:{Pd+4*aa+3}], {c}')
    vreads(0, VFB[0]); vreads(8, VFB[1])
    smfma(SBUF[0], 0, CN); smfma(SBUF[1], 8, CN)
    smfma(SC, 1, CN)
    for r in range(16):
        a(f'v_cndmask_b32 v{SBUF[0]+r}, v{SBUF[0]+r}, v{SBUF[1]+r}, s[{MS[r]}:{MS[r]+1}]')
    smfma(SBUF[1], 2, CN)
    exps(SBUF[0], P)
    for i in range(8):
        a(f'v_and_b32 v{P2+i}, v{P+i}, v{M8+i}')
        a(f'v_xor_b32 v{P+i}, v{P+i}, v{P2+i}')
    a('s_waitcnt lgkmcnt(0)')
    pv(VFB[0], P, first=True); pv(VFB[1], P2)
    PB = [P, P2]
    for kb in range(1, 8):
        VF = VFB[kb % 2]
        vreads(kb, VF)
        if kb + 2 <= 7: smfma(bufof[kb + 2], kb + 2, CN)
        exps(bufof[kb], PB[kb % 2])
        a('s_waitcnt lgkmcnt(0)')
        pv(VF, PB[kb % 2])
    a(f'''
    v_mov_b32 v29, v{O+8}
    v_mov_b32 v30, v{O+8}
    v_permlane32_swap_b32 v29, v30
    v_rcp_f32 v30, v30
    ''')
    vm.wait_for(a, lambda t: t == 'G')
    a(f'''
    v_mul_f32 v30, v30, v13
    s_lshl_b32 s70, s73, 5
    v_add_u32 v24, s70, v5
    v_mul_u32_u24 v24, 80, v24
    s_mul_i32 s70, s72, 40
    s_add_u32 s70, s70, {OST}
    v_add_u32 v24, s70, v24
    v_lshl_add_u32 v24, v6, 3, v24
    ''')
    for i in range(3):
        for r in range(4): a(f'v_mul_f32 v{O+4*i+r}, v{O+4*i+r}, v30')
        a(f'v_cvt_pk_bf16_f32 v{O+4*i}, v{O+4*i}, v{O+4*i+1}')
        a(f'v_cvt_pk_bf16_f32 v{O+4*i+1}, v{O+4*i+2}, v{O+4*i+3}')
    a(f'ds_write_b64 v24, v[{O}:{O+1}]')
    a(f'ds_write_b64 v24, v[{O+4}:{O+5}] offset:16')
    a(f'''
    s_mov_b64 exec, 0xffffffff
    ds_write_b64 v24, v[{O+8}:{O+9}] offset:32
    s_mov_b64 exec, -1
    s_waitcnt lgkmcnt(0)
    s_barrier
    ''')
    a(f'''
    s_mul_i32 s70, s61, {8*80*256}
    s_mul_i32 s64, s60, 1280
    s_add_u32 s70, s70, s64
    s_add_u32 s70, s70, {O_OFF}
    ''')
    for i in range(2):
        a(f'''
        v_add_u32 v2, {512*i}, v0
        v_and_b32 v3, 15, v2
        v_lshrrev_b32 v4, 4, v2
        v_mul_u32_u24 v5, 0xcccd, v4
        v_lshrrev_b32 v5, 18, v5
        v_mul_u32_u24 v6, 5, v5
        v_sub_u32 v6, v4, v6
        v_lshl_add_u32 v9, v5, 4, v3
        v_mul_u32_u24 v9, 80, v9
        v_lshl_add_u32 v9, v6, 4, v9
        v_add_u32 v9, {OST}, v9
        ds_read_b128 v[{32+4*i}:{32+4*i+3}], v9
        v_mul_u32_u24 v{7+i}, 20480, v5
        v_lshl_add_u32 v6, v6, 4, v3
        v_lshl_add_u32 v{7+i}, v6, 4, v{7+i}
        ''')
    a(f'''
    v_cmp_le_u32 vcc, 128, v0
    v_mov_b32 v9, 0x7fffff00
    v_cndmask_b32 v8, v8, v9, vcc
    s_waitcnt lgkmcnt(1)
    buffer_store_dwordx4 v[32:35], v7, s[{S_WS}:{S_WS+3}], s70 offen {st_flags}
    s_waitcnt lgkmcnt(0)
    buffer_store_dwordx4 v[36:39], v8, s[{S_WS}:{S_WS+3}], s70 offen {st_flags}
    ''')
    return vm
```

```python
STAMP_OFF = 0x1580000
class Stamper:
    def __init__(self, a, enabled, base=76, maxn=20):
        self.a = a; self.en = enabled; self.n = 0; self.base = base; self.names = []; self.maxn = maxn
    def __call__(self, name):
        if not self.en: return
        assert self.n < self.maxn
        self.a(f'''
        s_memtime s[98:99]
        s_waitcnt lgkmcnt(0)
        s_mov_b32 s{self.base+self.n}, s98
        ''')
        self.names.append(name); self.n += 1
    def real(self, name):
        if not self.en: return
        self.a(f'''
        s_memrealtime s[98:99]
        s_waitcnt lgkmcnt(0)
        s_mov_b32 s{self.base+self.n}, s98
        ''')
        self.names.append(name); self.n += 1
    def flush(self, v0, S_WS=36):
        if not self.en: return
        a = self.a
        a(f'''
        s_lshl_b32 s98, s2, 3
        s_add_u32 s98, s98, s3
        s_lshl_b32 s98, s98, 8
        s_add_u32 s98, s98, {STAMP_OFF}
        v_mov_b32 v{v0+1}, 0
        ''')
        for i in range(self.n):
            a(f'v_mov_b32 v{v0}, s{self.base+i}')
            a(f'buffer_store_dword v{v0}, v{v0+1}, s[{S_WS}:{S_WS+3}], s98 offen offset:{4*i}')
            a('s_nop 1')
```

```python
import sys
from gen1 import prologue, kernel_wrap, kd, KN, S_WS
from asm import *
import g1v2, g2v2, gen_attn

S_DBG = 40
SD = 88

def signal(a, val):
    lab = f'L_sig{val}_{a.name}'
    a(f'''
    s_waitcnt vmcnt(0)
    s_barrier
    s_cmp_lg_u32 s3, 0
    s_cbranch_scc1 {lab}
    v_mov_b32 v8, {val}
    v_mov_b32 v9, s92
    s_mov_b64 exec, 1
    buffer_store_byte v8, v9, s[{SD}:{SD+3}], 0 offen sc1
    s_mov_b64 exec, -1
    ''')
    a.label(lab)

def wait_flags(a, first_byte_sreg, ndw, minval, tag, va=8, vb=9):
    lab = f'L_poll{tag}_{a.name}'; done = f'L_polld{tag}_{a.name}'
    rep = minval * 0x01010101
    a(f'''
    s_cmp_lg_u32 s3, 0
    s_cbranch_scc1 {done}
    v_lshlrev_b32 v{va}, 2, v1
    v_cmp_gt_u32 vcc, {ndw}, v1
    v_cndmask_b32 v{va}, 0, v{va}, vcc
    v_add_u32 v{va}, {first_byte_sreg}, v{va}
    ''')
    a.label(lab)
    add = (0x80 - minval) * 0x01010101
    a(f'''
    buffer_load_dword v{vb}, v{va}, s[{SD}:{SD+3}], 0 offen sc1
    s_waitcnt vmcnt(0)
    v_add_u32 v{vb}, {add:#x}, v{vb}
    v_and_b32 v{vb}, 0x80808080, v{vb}
    v_cmp_ne_u32 vcc, 0x80808080, v{vb}
    s_cmp_eq_u64 vcc, 0
    s_cbranch_scc1 {done}
    s_sleep 2
    s_branch {lab}
    ''')
    a.label(done)
    a('s_barrier')

def build():
    nm = 'k'
    a = Asm(); a.name = nm
    prologue(a)
    a(f'''
    s_mov_b32 s{SD}, s56
    s_and_b32 s{SD+1}, s57, 0xffff
    s_mov_b32 s{SD+2}, 256
    s_mov_b32 s{SD+3}, 0x00020000
    ''')
    a('''
    s_and_b32 s63, s2, 7
    s_lshr_b32 s64, s2, 3
    s_lshr_b32 s93, s63, 1
    s_lshl_b32 s93, s93, 2
    s_and_b32 s65, s64, 3
    s_add_u32 s93, s93, s65
    s_lshr_b32 s62, s64, 2
    s_and_b32 s94, s63, 1
    s_lshl_b32 s94, s94, 3
    s_add_u32 s94, s94, s62
    s_lshl_b32 s92, s93, 4
    s_add_u32 s92, s92, s94
    ''')
    g1v2.gemm1(a, st_flags='sc1', after_A=lambda a, vm: signal(a, 1))
    signal(a, 2)
    a('''
    s_sub_i32 s64, s93, 2
    s_max_i32 s64, s64, 0
    s_lshl_b32 s64, s64, 4
    ''')
    wait_flags(a, 's64', 12, 1, 'A')
    gen_attn.attention(a, st_flags='sc1', ld_flags='sc1', role=('s94', 's93'))
    signal(a, 3)
    a(f'''
    s_cmp_ge_u32 s3, 4
    s_cbranch_scc1 L_END_{nm}
    ''')
    g2v2.gemm2(a, ld_flags='sc1', waitfn=wait_flags)
    a.label(f'L_END_{nm}')
    a('s_endpgm')
    a.finalize()
    lds = max(g1v2.G1_LDS, gen_attn.K2_LDS, g2v2.G2_LDS)
    out = [f'''; fused persistent kernel
; @launch grid=(256,1,1) block=(512,1,1) lds={lds}
.amdgcn_target "amdgcn-amd-amdhsa--gfx950"
.text
''']
    out.append(kernel_wrap(KN + '_kernel', a.text(), 256))
    out.append('.section .rodata,"a"\n.p2align 6\n')
    out.append(kd(KN + '_kernel', 256, 102))
    return ''.join(out)

if __name__ == '__main__':
    open(sys.argv[1], 'w').write(build())
```

```python
STAMP_OFF = 0x1580000
class Stamper:
    def __init__(self, a, enabled, base=76, maxn=20):
        self.a = a; self.en = enabled; self.n = 0; self.base = base; self.names = []; self.maxn = maxn
    def __call__(self, name):
        if not self.en: return
        assert self.n < self.maxn
        self.a(f'''
        s_memtime s[98:99]
        s_waitcnt lgkmcnt(0)
        s_mov_b32 s{self.base+self.n}, s98
        ''')
        self.names.append(name); self.n += 1
    def real(self, name):
        if not self.en: return
        self.a(f'''
        s_memrealtime s[98:99]
        s_waitcnt lgkmcnt(0)
        s_mov_b32 s{self.base+self.n}, s98
        ''')
        self.names.append(name); self.n += 1
    def flush(self, v0, S_WS=36):
        if not self.en: return
        a = self.a
        a(f'''
        s_lshl_b32 s98, s2, 3
        s_add_u32 s98, s98, s3
        s_lshl_b32 s98, s98, 8
        s_add_u32 s98, s98, {STAMP_OFF}
        v_mov_b32 v{v0+1}, 0
        ''')
        for i in range(self.n):
            a(f'v_mov_b32 v{v0}, s{self.base+i}')
            a(f'buffer_store_dword v{v0}, v{v0+1}, s[{S_WS}:{S_WS+3}], s98 offen offset:{4*i}')
            a('s_nop 1')


class RT:
    def __init__(self, a, enabled, lds_off, vt=2):
        self.a = a; self.en = enabled; self.n = 0; self.names = []; self.off = lds_off; self.stride = 128
    def __call__(self, name, vt):
        if not self.en: return
        a = self.a
        assert self.n < 11, name
        a(f'''
        {'s_memtime' if name.startswith('c_') else 's_memrealtime'} s[98:99]
        s_waitcnt lgkmcnt(0)
        v_mov_b32 v{vt}, s98
        s_mul_i32 s99, s3, {self.stride}
        s_add_u32 s99, s99, {self.off + 4*self.n}
        v_mov_b32 v{vt+1}, s99
        ds_write_b32 v{vt+1}, v{vt}
        s_waitcnt lgkmcnt(0)
        ''')
        self.names.append(name); self.n += 1
    def dump(self, S_WS=36):
        if not self.en: return
        a = self.a
        a(f'''
        s_mul_i32 s99, s3, {self.stride}
        s_add_u32 s99, s99, {self.off}
        v_lshlrev_b32 v2, 2, v1
        v_add_u32 v3, s99, v2
        ds_read_b32 v4, v3
        s_lshl_b32 s98, s2, 3
        s_add_u32 s98, s98, s3
        s_lshl_b32 s98, s98, 8
        s_add_u32 s98, s98, {STAMP_OFF}
        s_waitcnt lgkmcnt(0)
        v_cmp_gt_u32 vcc, 11, v1
        v_mov_b32 v5, 0x7fffff00
        v_cndmask_b32 v2, v5, v2, vcc
        buffer_store_dword v4, v2, s[{S_WS}:{S_WS+3}], s98 offen
        ''')
```

```python
import sys, math
from asm import *
from gen1 import VM, f32bits, KN, kd, kernel_wrap
from stamp import RT

S_X, S_WQKV, S_W1, S_W2, S_WO, S_GW, S_OUT, S_WS, S_DBG = 8, 12, 16, 20, 24, 28, 32, 36, 88
QKV_OFF = 0
H_OFF = 0x800000
O_OFF = 0xE00000
G_OFF = 0x1100000
WS_SIZE = 0x1600000
CQ = math.log2(math.e) / math.sqrt(20.0)
LDS_TOTAL = 163840
SLOT = 32768
KV_BASE = 98304
ARR = 3104
OST = 73728
CNT_LDS = 163456
RT_LDS = 163488

def rsrc(d): return f's[{d}:{d+3}]'

class Ctx: pass

class LG:
    def __init__(self): self.ops = []
    def issue(self, tag): self.ops.append(tag)
    def wait_for(self, a, pred):
        last = -1
        for i, t in enumerate(self.ops):
            if pred(t): last = i
        assert last >= 0
        n = len(self.ops) - 1 - last
        a('s_waitcnt lgkmcnt(%d)' % min(n, 15))

def prologue(a, C):
    a(f'''
    s_cmp_ge_u32 s2, 256
    s_cbranch_scc1 L_END
    s_load_dwordx4 s[40:43], s[0:1], 0
    s_load_dwordx2 s[44:45], s[0:1], 16
    s_load_dwordx4 s[48:51], s[0:1], 32
    s_load_dwordx4 s[52:55], s[0:1], 48
    s_load_dwordx4 s[56:59], s[0:1], 64
    v_and_b32 v1, 63, v0
    v_lshrrev_b32 v2, 6, v0
    s_and_b32 s63, s2, 7
    s_lshr_b32 s64, s2, 3
    v_readfirstlane_b32 s3, v2
    s_lshr_b32 s93, s63, 1
    s_lshl_b32 s93, s93, 2
    s_and_b32 s65, s64, 3
    s_add_u32 s93, s93, s65
    s_lshr_b32 s62, s64, 2
    s_and_b32 s94, s63, 1
    s_lshl_b32 s94, s94, 3
    s_add_u32 s94, s94, s62
    s_lshl_b32 s92, s93, 4
    s_add_u32 s92, s92, s94
    ''')

def build_srds(a):
    def srd(d, lo, size):
        a(f'''
        s_mov_b32 s{d}, s{lo}
        s_and_b32 s{d+1}, s{lo+1}, 0xffff
        s_mov_b32 s{d+2}, {size}
        s_mov_b32 s{d+3}, 0x00020000
        ''')
    a('s_waitcnt lgkmcnt(0)')
    srd(S_X, 40, 2048 * 1280)
    srd(S_WQKV, 42, 640 * 3840)
    srd(S_W1, 48, 640 * 3072)
    srd(S_GW, 52, 1280)
    srd(S_WS, 58, WS_SIZE)
    srd(S_DBG, 56, 256)
    srd(S_WO, 44, 640 * 1280)
    srd(S_W2, 50, 1536 * 1280)
    srd(S_OUT, 54, 2048 * 1280)

def signal(a, val, tag):
    lab = f'L_sig{tag}'
    a(f'''
    s_waitcnt vmcnt(0)
    s_barrier
    s_cmp_lg_u32 s3, 0
    s_cbranch_scc1 {lab}
    v_mov_b32 v8, {val}
    v_mov_b32 v9, s92
    s_mov_b64 exec, 1
    buffer_store_byte v8, v9, {rsrc(S_DBG)}, 0 offen sc1
    s_mov_b64 exec, -1
    ''')
    a.label(lab)

def poll(a, first_sreg, ndw, minval, tag, va, vb):
    lab = f'L_poll{tag}'; done = f'L_polld{tag}'
    add = (0x80 - minval) * 0x01010101
    a(f'''
    v_lshlrev_b32 v{va}, 2, v1
    v_cmp_gt_u32 vcc, {ndw}, v1
    v_cndmask_b32 v{va}, 0, v{va}, vcc
    v_add_u32 v{va}, {first_sreg}, v{va}
    ''')
    a.label(lab)
    a(f'''
    buffer_load_dword v{vb}, v{va}, {rsrc(S_DBG)}, 0 offen sc1
    s_waitcnt vmcnt(0)
    v_add_u32 v{vb}, {add:#x}, v{vb}
    v_and_b32 v{vb}, 0x80808080, v{vb}
    v_cmp_ne_u32 vcc, 0x80808080, v{vb}
    s_cmp_eq_u64 vcc, 0
    s_cbranch_scc1 {done}
    s_sleep 1
    s_branch {lab}
    ''')
    a.label(done)

XF = 96; ACC = 64; WF = 32
def xf(s, t): return XF + (s * 2 + t) * 4

def gemm1(a, C):
    rt = C.rt
    vm = VM(); lg = LG()
    def acc(t, nt): return ACC + (t * 4 + nt) * 4
    def wf(ksl, nt): return WF + (ksl * 4 + nt) * 4
    a('''
    v_lshrrev_b32 v6, 3, v1
    v_lshrrev_b32 v7, 4, v1
    v_and_b32 v8, 7, v1
    s_lshl_b32 s64, s3, 4
    v_add_u32 v9, s64, v6
    v_mul_u32_u24 v4, 1280, v9
    v_xor_b32 v10, v8, v7
    v_lshl_add_u32 v4, v10, 4, v4
    v_xor_b32 v10, 4, v10
    v_add_u32 v9, 8, v9
    v_mul_u32_u24 v5, 1280, v9
    v_lshl_add_u32 v5, v10, 4, v5
    s_mul_i32 s66, s93, 163840
    s_lshr_b32 s64, s3, 2
    s_lshl_b32 s64, s64, 5
    s_and_b32 s65, s3, 1
    s_lshl_b32 s65, s65, 4
    s_add_u32 s64, s64, s65
    v_add_u32 v9, s64, v6
    v_and_b32 v10, 2, v6
    v_xor_b32 v10, v8, v10
    s_bfe_u32 s65, s3, 0x10001
    s_lshl_b32 s65, s65, 7
    v_lshl_add_u32 v13, v10, 4, s65
    v_xor_b32 v10, 4, v10
    v_lshl_add_u32 v14, v10, 4, s65
    v_mul_u32_u24 v2, 3840, v9
    v_add_u32 v2, v2, v13
    v_add_u32 v10, 8, v9
    v_mul_u32_u24 v3, 3840, v10
    v_add_u32 v3, v3, v14
    s_lshl_b32 s67, s94, 8
    s_lshl_b32 s68, s3, 11
    s_lshr_b32 s64, s3, 2
    s_lshl_b32 s69, s64, 13
    s_bfe_u32 s65, s3, 0x10001
    s_lshl_b32 s65, s65, 12
    s_add_u32 s69, s69, s65
    s_and_b32 s65, s3, 1
    s_lshl_b32 s65, s65, 11
    s_add_u32 s69, s69, s65
    s_add_u32 s69, s69, 16384
    ''')
    a('''
    s_cmp_eq_u32 s94, 15
    s_cselect_b32 s67, 0x7ff00000, s67
    s_cselect_b32 s70, 0, %d
    ''' % (64*3840))
    build_srds(a)
    def issue_A(sg):
        slot = (sg % 4) * SLOT
        for i in range(2):
            a(f's_add_u32 m0, s68, {slot + 1024*i}')
            a(f'buffer_load_dwordx4 v{4+i}, {rsrc(S_X)}, s66 offen lds'); vm.issue(('A', sg))
        for i in range(2):
            a(f's_add_u32 m0, s69, {slot + 1024*i}')
            a(f'buffer_load_dwordx4 v{2+i}, {rsrc(S_WQKV)}, s67 offen lds'); vm.issue(('A', sg))
        a('s_add_u32 s66, s66, 128\ns_add_u32 s67, s67, s70')
    for sg in range(3): issue_A(sg)

    a('''
    s_lshr_b32 s64, s2, 3
    s_bfe_u32 s65, s2, 0x20001
    s_lshl_b32 s65, s65, 9
    s_lshl_b32 s73, s64, 4
    s_add_u32 s65, s65, s73
    v_and_b32 v8, 15, v1
    v_add_u32 v9, s65, v8
    v_mul_u32_u24 v31, 1280, v9
    v_lshl_add_u32 v31, v7, 7, v31
    v_lshrrev_b32 v9, 5, v1
    v_lshlrev_b32 v9, 6, v9
    v_bfe_u32 v10, v1, 4, 1
    v_add_u32 v9, v9, v10
    s_lshl_b32 s64, s64, 1
    v_add_u32 v9, s64, v9
    v_mul_u32_u24 v14, 3840, v9
    v_lshl_add_u32 v14, v8, 7, v14
    s_and_b32 s65, s2, 1
    s_lshl_b32 s65, s65, 11
    v_add_u32 v14, s65, v14
    ''')
    TD = 255
    def touchX(st0):
        a(f'buffer_load_dword v{TD}, v31, {rsrc(S_X)}, 0 offen offset:{128*st0}')
    def touchW(st0):
        a(f's_mov_b32 s73, {64*3840*st0}')
        a(f'buffer_load_dword v{TD}, v14, {rsrc(S_WQKV)}, s73 offen')
    def only_wave(wv, fn, tag):
        a(f's_cmp_lg_u32 s3, {wv}')
        a(f's_cbranch_scc1 L_t{tag}')
        fn()
        a.label(f'L_t{tag}')
    only_wave(0, lambda: touchX(3), 'x0'); only_wave(1, lambda: touchW(3), 'w0'); only_wave(2, lambda: touchW(5), 'w1')
    only_wave(3, lambda: touchX(7), 'x1'); only_wave(4, lambda: touchW(7), 'w2'); only_wave(5, lambda: (touchW(9)), 'w3')
    rt('issued', 8)
    for b in range(3):
        a(f'''
        v_add_u32 v8, {64*b}, v1
        v_mul_u32_u24 v9, 171, v8
        v_lshrrev_b32 v9, 10, v9
        v_mul_u32_u24 v10, 6, v9
        v_sub_u32 v10, v8, v10
        v_bfe_u32 v14, v9, 2, 2
        v_lshlrev_b32 v14, 3, v14
        v_lshrrev_b32 v15, 4, v9
        v_lshl_add_u32 v14, v15, 2, v14
        v_and_b32 v15, 3, v9
        v_add_u32 v14, v14, v15
        v_mul_u32_u24 v{11+b}, 3072, v14
        v_lshl_add_u32 v{11+b}, v10, 4, v{11+b}
        ''')
    a('''
    s_lshr_b32 s64, s3, 1
    s_mul_i32 s71, s64, 98304
    s_mul_i32 s65, s94, 192
    s_add_u32 s71, s71, s65
    s_and_b32 s65, s3, 1
    s_mul_i32 s65, s65, 96
    s_add_u32 s71, s71, s65
    s_mul_i32 s72, s3, 3072
    ''')
    def issue_B(j):
        slot = ((10 + j) % 4) * SLOT
        for b in range(3):
            a(f's_add_u32 m0, s72, {slot + 1024*b}')
            a(f'buffer_load_dwordx4 v{11+b}, {rsrc(S_W1)}, s71 offen lds'); vm.issue(('B', j))
        a(f's_add_u32 s71, s71, {128*3072}')
    a('''
    v_and_b32 v6, 15, v1
    v_lshrrev_b32 v8, 1, v6
    v_xor_b32 v9, v7, v8
    s_and_b32 s64, s3, 3
    s_lshl_b32 s64, s64, 12
    v_lshlrev_b32 v10, 7, v6
    v_add_u32 v10, s64, v10
    v_lshl_add_u32 v16, v9, 4, v10
    v_xor_b32 v9, 4, v9
    v_lshl_add_u32 v17, v9, 4, v10
    v_add_u32 v18, 0x10000, v16
    v_add_u32 v19, 0x10000, v17
    v_bfe_u32 v8, v1, 2, 2
    v_and_b32 v9, 3, v1
    v_lshrrev_b32 v10, 1, v8
    v_and_b32 v14, 1, v7
    v_lshl_or_b32 v10, v14, 1, v10
    v_lshl_add_u32 v14, v7, 3, v8
    v_lshlrev_b32 v14, 7, v14
    v_lshl_add_u32 v14, v9, 3, v14
    s_lshr_b32 s64, s3, 2
    s_lshl_b32 s65, s64, 12
    s_add_u32 s65, s65, 16384
    v_add_u32 v14, s65, v14
    ''')
    for nt in range(4):
        a(f'''
        v_xor_b32 v15, {nt}, v10
        v_lshl_add_u32 v{20+nt}, v15, 5, v14
        v_add_u32 v{24+nt}, 0x10000, v{20+nt}
        ''')
    a('''
    v_lshl_add_u32 v14, v7, 2, v8
    v_mul_u32_u24 v28, 96, v14
    v_lshl_add_u32 v28, v9, 3, v28
    s_mul_i32 s65, s64, 3072
    v_add_u32 v28, s65, v28
    v_add_u32 v29, 0x10000, v28
    v_lshlrev_b32 v30, 4, v1
    ''')
    for i in range(32): a(f'v_mov_b32 v{ACC+i}, 0')
    def xaddr(sg, ksl):
        sl = sg % 4
        return (16 + ksl + (2 if sl >= 2 else 0), (sl % 2) * SLOT)
    def waddr(sg, nt):
        sl = sg % 4
        return (20 + nt + (4 if sl >= 2 else 0), (sl % 2) * SLOT)
    def xreads(sg):
        for ksl in range(2):
            va, off = xaddr(sg, ksl)
            for t in range(2):
                r0 = xf(2*sg + ksl, t)
                a(f'ds_read_b128 v[{r0}:{r0+3}], v{va} offset:{off + 2048*t}'); lg.issue(('x', sg))
    def wread(sg, ksl, nt):
        va, off = waddr(sg, nt)
        W = wf(ksl, nt)
        for u in range(2):
            a(f'ds_read_b64_tr_b16 v[{W+2*u}:{W+2*u+1}], v{va} offset:{off + ksl*8192 + 512*u}'); lg.issue(('w', sg, ksl, nt))
    nB = [0]
    def next_issue(sg):
        if sg + 3 < 10: issue_A(sg + 3)
        else:
            issue_B(nB[0]); nB[0] += 1
    a('''
    s_cmp_eq_u32 s94, 15
    s_cbranch_scc1 L_GWG
    ''')
    vm_save = list(vm.ops)
    vm.wait_for(a, lambda t: t == ('A', 0))
    a('s_barrier')
    xreads(0)
    for ksl in range(2):
        for nt in range(4): wread(0, ksl, nt)
    for sg in range(10):
        if sg + 1 < 10:
            vm.wait_for(a, lambda t: t == ('A', sg + 1))
        if sg == 9: a('s_waitcnt lgkmcnt(0)')
        a('s_barrier')
        next_issue(sg)
        more = sg + 1 < 10
        if more: xreads(sg + 1)
        for ksl in range(2):
            for nt in range(4):
                lg.wait_for(a, lambda t: t == ('w', sg, ksl, nt))
                for t in range(2):
                    x = xf(2*sg + ksl, t)
                    a(f'v_mfma_f32_16x16x32_bf16 v[{acc(t,nt)}:{acc(t,nt)+3}], v[{wf(ksl,nt)}:{wf(ksl,nt)+3}], v[{x}:{x+3}], v[{acc(t,nt)}:{acc(t,nt)+3}]')
                if more: wread(sg + 1, ksl, nt)
        if sg in (4, 9): rt(f'A{sg}', 8)
    a(f'''
    v_lshlrev_b32 v8, 14, v7
    v_lshl_add_u32 v8, v6, 3, v8
    s_lshl_b32 s64, s94, 5
    s_lshr_b32 s65, s3, 2
    s_lshl_b32 s65, s65, 4
    s_add_u32 s64, s64, s65
    s_lshl_b32 s64, s64, 14
    s_lshl_b32 s65, s93, 7
    s_and_b32 s73, s3, 3
    s_lshl_b32 s73, s73, 5
    s_add_u32 s65, s65, s73
    s_lshl_b32 s65, s65, 3
    s_add_u32 s64, s64, s65
    s_add_u32 s64, s64, {QKV_OFF}
    s_cmp_lt_u32 s94, 5
    s_cselect_b32 s65, {f32bits(CQ):#x}, 1.0
    ''')
    for nt in range(4):
        for t in range(2):
            A = acc(t, nt)
            for r in range(4): a(f'v_mul_f32 v{A+r}, s65, v{A+r}')
            a(f'v_cvt_pk_bf16_f32 v{A}, v{A}, v{A+1}')
            a(f'v_cvt_pk_bf16_f32 v{A+1}, v{A+2}, v{A+3}')
            a(f'buffer_store_dwordx2 v[{A}:{A+1}], v8, {rsrc(S_WS)}, s64 offen offset:{128*t} sc1'); vm.issue(('ST',))
        a('s_add_u32 s64, s64, 65536')
    a('s_branch L_AJOIN')
    vm_norm = list(vm.ops)
    a.label('L_GWG')
    vm.ops = list(vm_save); nB[0] = 0
    a('v_lshlrev_b32 v8, 4, v7')
    GACC = ACC
    for s in range(8):
        a(f'buffer_load_dwordx4 v[{WF+4*s}:{WF+4*s+3}], v8, {rsrc(S_GW)}, 0 offen offset:{64*s}'); vm.issue(('GW', s))
    for sg in range(10):
        vm.wait_for(a, lambda t: t == ('A', sg))
        a('s_barrier')
        next_issue(sg)
        xreads(sg)
        for ksl in range(2):
            s = 2*sg + ksl
            vm.wait_for(a, lambda t: t == ('GW', s))
            a(f's_waitcnt lgkmcnt({2 if ksl == 0 else 0})')
            for t in range(2):
                x = xf(s, t)
                a(f'v_mfma_f32_16x16x32_bf16 v[{GACC+4*t}:{GACC+4*t+3}], v[{WF+4*(s%8)}:{WF+4*(s%8)+3}], v[{x}:{x+3}], v[{GACC+4*t}:{GACC+4*t+3}]')
            if s + 8 < 20:
                a(f'buffer_load_dwordx4 v[{WF+4*(s%8)}:{WF+4*(s%8)+3}], v8, {rsrc(S_GW)}, 0 offen offset:{64*(s+8)}'); vm.issue(('GW', s + 8))
    for t in range(2):
        z = GACC + 4*t
        a(f'''
        v_mul_f32 v{z}, {f32bits(-math.log2(math.e)):#x}, v{z}
        v_exp_f32 v{z}, v{z}
        v_add_f32 v{z}, 1.0, v{z}
        v_rcp_f32 v{z}, v{z}
        ''')
    a(f'''
    v_lshlrev_b32 v8, 2, v6
    v_cmp_gt_u32 vcc, 16, v1
    v_mov_b32 v9, 0x7fffff00
    v_cndmask_b32 v8, v9, v8, vcc
    s_lshl_b32 s64, s93, 7
    s_and_b32 s65, s3, 3
    s_lshl_b32 s65, s65, 5
    s_add_u32 s64, s64, s65
    s_lshl_b32 s64, s64, 2
    s_add_u32 s64, s64, {G_OFF}
    buffer_store_dword v{GACC}, v8, {rsrc(S_WS)}, s64 offen sc1
    buffer_store_dword v{GACC+4}, v8, {rsrc(S_WS)}, s64 offen offset:64 sc1
    ''')
    a.label('L_AJOIN')
    signal(a, 1, 'A')
    rt('sigA', 8)
    vm.ops = []
    def accB(t, nt): return ACC + (t * 3 + nt) * 4
    def wfB(k, nt): return WF + ((k % 2) * 3 + nt) * 4
    def wreadB(k, nt):
        j = k // 4; ksl = k % 4
        sl = (10 + j) % 4
        va = 28 + (1 if sl >= 2 else 0)
        off = (sl % 2) * SLOT + ksl * 6144 + nt * 32
        W = wfB(k, nt)
        for u in range(2):
            a(f'ds_read_b64_tr_b16 v[{W+2*u}:{W+2*u+1}], v{va} offset:{off + 1536*u}'); lg.issue(('wb', k, nt))
    for i in range(24): a(f'v_mov_b32 v{ACC+i}, 0')
    lg.ops = []
    issue_B(3)
    for k in range(2):
        for nt in range(3): wreadB(k, nt)
    for k in range(20):
        if k == 6:
            a('s_barrier')
            issue_B(4)
        if k == 10:
            vm.wait_for(a, lambda t: t == ('B', 3))
            if C.kv_poll: C.kv_poll(a)
            a('s_barrier')
            if C.kv_issue: C.kv_issue(a, vm)
        if k == 14:
            vm.wait_for(a, lambda t: t == ('B', 4))
            a('s_barrier')
        for nt in range(3):
            lg.wait_for(a, lambda t: t == ('wb', k, nt))
            for t in range(2):
                x = xf(k, t)
                a(f'v_mfma_f32_16x16x32_bf16 v[{accB(t,nt)}:{accB(t,nt)+3}], v[{wfB(k,nt)}:{wfB(k,nt)+3}], v[{x}:{x+3}], v[{accB(t,nt)}:{accB(t,nt)+3}]')
            if k + 2 < 20: wreadB(k + 2, nt)
    rt('Bdone', 8)
    a(f'''
    s_lshl_b32 s64, s93, 2
    s_and_b32 s65, s3, 3
    s_add_u32 s64, s64, s65
    s_mul_i32 s64, s64, 96
    s_mul_i32 s65, s94, 6
    s_add_u32 s64, s64, s65
    s_lshr_b32 s65, s3, 2
    s_mul_i32 s65, s65, 3
    s_add_u32 s64, s64, s65
    s_lshl_b32 s64, s64, 10
    s_add_u32 s64, s64, {H_OFF}
    ''')
    for nt in range(3):
        D0 = WF + 4*nt
        for t in range(2):
            A = accB(t, nt)
            for r in range(4): a(f'v_max_f32 v{A+r}, 0, v{A+r}')
            a(f'v_cvt_pk_bf16_f32 v{D0+2*t}, v{A}, v{A+1}')
            a(f'v_cvt_pk_bf16_f32 v{D0+2*t+1}, v{A+2}, v{A+3}')
        a(f'buffer_store_dwordx4 v[{D0}:{D0+3}], v30, {rsrc(S_WS)}, s64 offen offset:{1024*nt} sc1'); vm.issue(('ST',))
    return vm


def kv_poll(a):
    a('''
    s_cmp_lg_u32 s3, 0
    s_cbranch_scc1 L_kvp_skip
    s_sub_i32 s64, s93, 2
    s_max_i32 s64, s64, 0
    s_lshl_b32 s64, s64, 4
    ''')
    poll(a, 's64', 12, 1, 'KV', 8, 9)
    a.label('L_kvp_skip')

def kv_issue(a, vm):
    for i in range(8):
        a(f'''
        s_add_u32 s64, s3, {8*i}
        s_cmp_ge_u32 s64, 60
        s_cselect_b32 s65, 4, 0
        s_sub_u32 s64, s64, s65
        s_mul_i32 s65, s64, 171
        s_lshr_b32 s65, s65, 9
        s_mul_i32 s73, s65, 3
        s_sub_u32 s73, s64, s73
        s_mul_i32 s74, s65, {ARR}
        s_lshl_b32 s75, s73, 10
        s_add_u32 s74, s74, s75
        s_add_u32 m0, s74, {KV_BASE}
        s_cmp_ge_u32 s65, 10
        s_cselect_b32 s74, 150, 0
        s_add_u32 s65, s65, s74
        s_add_u32 s65, s65, 160
        s_mul_i32 s74, s94, 10
        s_add_u32 s65, s65, s74
        s_lshl_b32 s65, s65, 14
        s_add_u32 s73, s73, s93
        s_sub_i32 s73, s73, 2
        s_lshl_b32 s74, s73, 10
        s_add_u32 s65, s65, s74
        s_cmp_lt_i32 s73, 0
        s_cselect_b32 s65, 0x7ff00000, s65
        buffer_load_dwordx4 v30, {rsrc(S_WS)}, s65 offen sc1 lds
        '''); vm.issue(('KV',))

def init_lds_consts(a):
    a(f'''
    s_cmp_ge_u32 s3, 6
    s_cbranch_scc1 L_noones
    s_lshl_b32 s64, s3, 9
    v_lshl_add_u32 v8, v1, 3, s64
    v_add_u32 v8, {KV_BASE + 20*ARR}, v8
    v_mov_b32 v10, 0x3f80
    v_mov_b32 v11, 0
    ds_write_b64 v8, v[10:11]
    v_mov_b32 v8, {CNT_LDS}
    ds_write_b32 v8, v11
    ''')
    a.label('L_noones')

def attention(a, C):
    rt = C.rt
    vm = VM(); lg = LG()
    KF = 32; QR = [104, 232]
    SBUF = [112, 128]; SC = 144; NEGM = 160; P = 176; P2 = 184; VFB = [192, 200]; O = 208; M8 = 224
    a(f'''
    s_lshl_b32 s74, s93, 7
    s_lshl_b32 s70, s3, 5
    s_add_u32 s74, s74, s70
    v_and_b32 v5, 31, v1
    v_lshrrev_b32 v6, 5, v1
    v_add_u32 v7, s74, v5
    v_lshlrev_b32 v8, 3, v7
    v_lshl_add_u32 v9, v6, 15, v8
    v_add_u32 v10, 65536, v8
    v_cmp_eq_u32 vcc, 0, v6
    v_mov_b32 v11, 0x7fffff00
    v_cndmask_b32 v10, v11, v10, vcc
    s_mul_i32 s70, s94, {10*16384}
    s_add_u32 s70, s70, {QKV_OFF}
    ''')
    for hh in range(2):
        Q0 = QR[hh]
        a(f'''
        s_add_u32 s71, s70, 16384
        buffer_load_dwordx2 v[{Q0}:{Q0+1}], v9, {rsrc(S_WS)}, s70 offen sc1
        buffer_load_dwordx2 v[{Q0+2}:{Q0+3}], v9, {rsrc(S_WS)}, s71 offen sc1
        buffer_load_dwordx2 v[{Q0+4}:{Q0+5}], v10, {rsrc(S_WS)}, s70 offen sc1
        s_add_u32 s70, s70, {5*16384}
        ''')
        for _ in range(3): vm.issue(('Q', hh))
    a(f'''
    v_lshlrev_b32 v12, 2, v7
    s_mov_b32 s70, {G_OFF}
    buffer_load_dword v13, v12, {rsrc(S_WS)}, s70 offen sc1
    v_mov_b32 v11, 0x3f80
    '''); vm.issue(('G',))
    for hh in range(2):
        a(f'v_cndmask_b32 v{QR[hh]+6}, 0, v11, vcc')
        a(f'v_mov_b32 v{QR[hh]+7}, 0')
    MS = [40 + 2*i for i in range(10)] + [76 + 2*i for i in range(6)]
    a('''
    v_lshlrev_b32 v14, 2, v6
    v_sub_u32 v14, v5, v14
    ''')
    for r in range(16):
        c = 8*(r >> 2) + (r & 3)
        a(f'v_cmp_le_i32 s[{MS[r]}:{MS[r]+1}], {c}, v14')
    a('v_mov_b32 v15, 0xffff')
    a('v_mov_b32 v16, 0xffff0000')
    for i in range(8):
        a(f'''
        v_cndmask_b32 v17, 0, v15, s[{MS[2*i]}:{MS[2*i]+1}]
        v_cndmask_b32 v18, 0, v16, s[{MS[2*i+1]}:{MS[2*i+1]+1}]
        v_or_b32 v{M8+i}, v17, v18
        ''')
    a('''
    s_lshr_b32 s75, s74, 5
    s_sub_i32 s75, 8, s75
    s_max_i32 s75, s75, 0
    ''')
    for kb in range(9):
        a(f'''
        s_cmp_gt_u32 s75, {kb}
        s_cselect_b32 s70, 0xf149, 0
        v_mov_b32 v{KF+8*kb+6}, s70
        v_mov_b32 v{KF+8*kb+7}, 0
        ''')
    a(f'''
    s_lshl_b32 s70, s3, 8
    s_add_u32 s70, s70, {KV_BASE}
    v_lshlrev_b32 v19, 3, v5
    v_add_u32 v19, s70, v19
    v_add_u32 v20, {4*ARR}, v19
    v_mul_u32_u24 v21, {2*ARR}, v6
    v_add_u32 v19, v19, v21
    v_bfe_u32 v21, v1, 4, 1
    v_bfe_u32 v22, v1, 2, 2
    v_and_b32 v23, 3, v1
    v_lshl_add_u32 v23, v21, 2, v23
    v_lshl_add_u32 v22, v6, 2, v22
    v_lshlrev_b32 v22, 3, v22
    v_add_u32 v22, s70, v22
    v_cmp_gt_u32 vcc, 5, v23
    v_add_u32 v24, 10, v23
    v_mov_b32 v25, 20
    v_cndmask_b32 v24, v25, v24, vcc
    v_add_u32 v26, 15, v23
    v_cndmask_b32 v26, v25, v26, vcc
    v_mul_u32_u24 v24, {ARR}, v24
    v_mul_u32_u24 v26, {ARR}, v26
    v_add_u32 v23, v22, v26
    v_add_u32 v22, v22, v24
    s_mul_i32 s70, s3, 2560
    s_add_u32 s70, s70, {OST}
    v_mul_u32_u24 v24, 80, v5
    v_add_u32 v24, s70, v24
    v_lshl_add_u32 v24, v6, 3, v24
    ''')
    MX = 28
    for hh in range(2):
        Q0 = QR[hh]; Q1 = Q0 + 4
        ko = hh * 5 * ARR
        for kb in range(9):
            a(f'ds_read_b64 v[{KF+8*kb}:{KF+8*kb+1}], v19 offset:{ko + kb*256}')
            a(f'ds_read_b64 v[{KF+8*kb+2}:{KF+8*kb+3}], v19 offset:{ko + kb*256 + ARR}')
            a(f'ds_read_b64 v[{KF+8*kb+4}:{KF+8*kb+5}], v20 offset:{ko + kb*256}')
        vm.wait_for(a, lambda t: t == ('Q', hh))
        def smfma(dst, kb, c):
            a(f'v_mfma_f32_32x32x16_bf16 v[{dst}:{dst+15}], v[{KF+8*kb}:{KF+8*kb+3}], v[{Q0}:{Q0+3}], {c}')
            a(f'v_mfma_f32_32x32x16_bf16 v[{dst}:{dst+15}], v[{KF+8*kb+4}:{KF+8*kb+7}], v[{Q1}:{Q1+3}], v[{dst}:{dst+15}]')
        a('s_waitcnt lgkmcnt(0)')
        def maxes(S, first):
            for i in range(8):
                if first and i == 0: a(f'v_max_f32 v{MX}, v{S}, v{S+1}')
                else: a(f'v_max3_f32 v{MX}, v{MX}, v{S+2*i}, v{S+2*i+1}')
        smfma(SBUF[0], 0, '0'); smfma(SBUF[1], 8, '0'); smfma(SC, 1, '0')
        for r in range(16):
            a(f'v_cndmask_b32 v{SBUF[0]+r}, v{SBUF[0]+r}, v{SBUF[1]+r}, s[{MS[r]}:{MS[r]+1}]')
        smfma(SBUF[1], 2, '0')
        maxes(SBUF[0], True)
        bufof = {1: SC, 2: SBUF[1]}
        rot = [SBUF[0], SC, SBUF[1]]
        for kb in range(3, 8): bufof[kb] = rot[(kb - 3) % 3]
        for kb in range(1, 8):
            if kb + 2 <= 7: smfma(bufof[kb + 2], kb + 2, '0')
            maxes(bufof[kb], False)
        a(f'''
        v_mov_b32 v29, v{MX}
        v_mov_b32 v30, v{MX}
        v_permlane32_swap_b32 v29, v30
        v_max_f32 v{MX}, v29, v30
        v_sub_f32 v{MX}, 0, v{MX}
        ''')
        for r in range(16): a(f'v_mov_b32 v{NEGM+r}, v{MX}')
        CN = f'v[{NEGM}:{NEGM+15}]'
        va = 22 + hh
        def vreads(kb, VF):
            for aa in range(2):
                for u in range(2):
                    a(f'ds_read_b64_tr_b16 v[{VF+4*aa+2*u}:{VF+4*aa+2*u+1}], v{va} offset:{kb*256 + aa*128 + u*64}')
        def exps(S, Pd):
            for i in range(8):
                a(f'v_exp_f32 v{S+2*i}, v{S+2*i}')
                a(f'v_exp_f32 v{S+2*i+1}, v{S+2*i+1}')
                a(f'v_cvt_pk_bf16_f32 v{Pd+i}, v{S+2*i}, v{S+2*i+1}')
        def pv(VF, Pd, first=False):
            for aa in range(2):
                c = '0' if (first and aa == 0) else f'v[{O}:{O+15}]'
                a(f'v_mfma_f32_32x32x16_bf16 v[{O}:{O+15}], v[{VF+4*aa}:{VF+4*aa+3}], v[{Pd+4*aa}:{Pd+4*aa+3}], {c}')
        vreads(0, VFB[0]); vreads(8, VFB[1])
        smfma(SBUF[0], 0, CN); smfma(SBUF[1], 8, CN); smfma(SC, 1, CN)
        for r in range(16):
            a(f'v_cndmask_b32 v{SBUF[0]+r}, v{SBUF[0]+r}, v{SBUF[1]+r}, s[{MS[r]}:{MS[r]+1}]')
        smfma(SBUF[1], 2, CN)
        exps(SBUF[0], P)
        for i in range(8):
            a(f'v_and_b32 v{P2+i}, v{P+i}, v{M8+i}')
            a(f'v_xor_b32 v{P+i}, v{P+i}, v{P2+i}')
        a('s_waitcnt lgkmcnt(0)')
        pv(VFB[0], P, first=True); pv(VFB[1], P2)
        PB = [P, P2]
        for kb in range(1, 8):
            VF = VFB[kb % 2]
            vreads(kb, VF)
            if kb + 2 <= 7: smfma(bufof[kb + 2], kb + 2, CN)
            exps(bufof[kb], PB[kb % 2])
            a('s_waitcnt lgkmcnt(0)')
            pv(VF, PB[kb % 2])
        a(f'''
        v_mov_b32 v29, v{O+8}
        v_mov_b32 v30, v{O+8}
        v_permlane32_swap_b32 v29, v30
        v_rcp_f32 v30, v30
        ''')
        if hh == 0: vm.wait_for(a, lambda t: t == ('G',))
        a('v_mul_f32 v30, v30, v13')
        for i in range(3):
            for r in range(4): a(f'v_mul_f32 v{O+4*i+r}, v{O+4*i+r}, v30')
            a(f'v_cvt_pk_bf16_f32 v{O+4*i}, v{O+4*i}, v{O+4*i+1}')
            a(f'v_cvt_pk_bf16_f32 v{O+4*i+1}, v{O+4*i+2}, v{O+4*i+3}')
        a(f'ds_write_b64 v24, v[{O}:{O+1}] offset:{40*hh}')
        a(f'ds_write_b64 v24, v[{O+4}:{O+5}] offset:{40*hh+16}')
        a(f'''
        s_mov_b64 exec, 0xffffffff
        ds_write_b64 v24, v[{O+8}:{O+9}] offset:{40*hh+32}
        s_mov_b64 exec, -1
        ''')
        rt(f'att{hh}', 8)
    a(f'''
    s_waitcnt lgkmcnt(0)
    s_lshl_b32 s70, s93, 3
    s_lshl_b32 s64, s3, 1
    s_add_u32 s70, s70, s64
    s_mul_i32 s70, s70, {80*256}
    s_mul_i32 s64, s94, 1280
    s_add_u32 s70, s70, s64
    s_add_u32 s70, s70, {O_OFF}
    s_mul_i32 s64, s3, 2560
    s_add_u32 s64, s64, {OST}
    ''')
    for i in range(3):
        a(f'''
        v_add_u32 v2, {64*i}, v1
        v_and_b32 v3, 15, v2
        v_lshrrev_b32 v4, 4, v2
        v_cmp_le_u32 vcc, 5, v4
        v_cndmask_b32 v5, 0, 1, vcc
        v_mul_u32_u24 v6, 5, v5
        v_sub_u32 v6, v4, v6
        v_lshl_add_u32 v9, v5, 4, v3
        v_mul_u32_u24 v9, 80, v9
        v_lshl_add_u32 v9, v6, 4, v9
        v_add_u32 v9, s64, v9
        ds_read_b128 v[{32+4*i}:{35+4*i}], v9
        v_mul_u32_u24 v{10+i}, 20480, v5
        v_lshl_add_u32 v6, v6, 4, v3
        v_lshl_add_u32 v{10+i}, v6, 4, v{10+i}
        ''')
    a(f'''
    v_cmp_le_u32 vcc, 32, v1
    v_mov_b32 v9, 0x7fffff00
    v_cndmask_b32 v12, v12, v9, vcc
    ''')
    for i in range(3):
        a(f's_waitcnt lgkmcnt({2-i})')
        a(f'buffer_store_dwordx4 v[{32+4*i}:{35+4*i}], v{10+i}, {rsrc(S_WS)}, s70 offen sc1')
    a(f'''
    s_waitcnt vmcnt(0)
    v_mov_b32 v8, {CNT_LDS}
    v_mov_b32 v9, 1
    s_mov_b64 exec, 1
    ds_add_rtn_u32 v10, v8, v9
    s_waitcnt lgkmcnt(0)
    v_readfirstlane_b32 s64, v10
    s_cmp_lg_u32 s64, 3
    s_cbranch_scc1 L_att_nosig
    v_mov_b32 v8, 3
    v_mov_b32 v9, s92
    buffer_store_byte v8, v9, {rsrc(S_DBG)}, 0 offen sc1
    ''')
    a.label('L_att_nosig')
    a('s_mov_b64 exec, -1')
    rt('attdone', 8)

def gemm2(a, C):
    rt = C.rt
    vm = VM()
    D = 3; R = 4
    W_ = 's87'
    ACCG = 160; ACT = 64; WFG = [32, 48]
    def acc(mt, nt): return ACCG + (mt * 4 + nt) * 4
    def act(step, i): return ACT + (step % (D + 1)) * 24 + 4 * i
    a(f'''
    s_sub_u32 s87, s3, 4
    s_and_b32 s62, s2, 7
    s_lshr_b32 s63, s2, 3
    s_mul_i32 s64, s63, 52
    s_lshr_b32 s64, s64, 8
    s_mul_i32 s65, s64, 5
    s_sub_u32 s65, s63, s65
    s_and_b32 s61, s62, 1
    s_mul_i32 s61, s61, 5
    s_add_u32 s61, s61, s65
    s_lshr_b32 s62, s62, 1
    s_mul_i32 s60, s62, 6
    s_cmp_eq_u32 s62, 3
    s_cselect_b32 s65, 17, s60
    s_mov_b32 s60, s65
    s_cmp_ge_u32 s62, 2
    s_cselect_b32 s65, 5, 6
    s_cmp_ge_u32 s64, s65
    s_cbranch_scc1 L_END
    s_add_u32 s60, s60, s64
    v_and_b32 v2, 15, v1
    v_lshrrev_b32 v3, 4, v1
    v_lshlrev_b32 v4, 4, v1
    v_lshrrev_b32 v5, 3, v1
    v_and_b32 v6, 7, v1
    v_lshlrev_b32 v7, 1, v3
    v_xor_b32 v6, v6, v7
    v_lshlrev_b32 v6, 4, v6
    ''')
    for b in range(4):
        a(f'''
        v_add_u32 v7, {8*b}, v5
        v_mul_u32_u24 v{10+b}, 1280, v7
        v_add_u32 v{10+b}, v{10+b}, v6
        v_bfe_u32 v8, v7, 2, 2
        v_lshlrev_b32 v8, 3, v8
        v_lshrrev_b32 v9, 4, v7
        v_lshl_add_u32 v8, v9, 2, v8
        v_and_b32 v9, 3, v7
        v_add_u32 v8, v8, v9
        v_mul_u32_u24 v{14+b}, 1280, v8
        v_add_u32 v{14+b}, v{14+b}, v6
        ''')
    a(f'''
    s_mul_i32 s65, {W_}, {R*4096}
    s_mul_i32 s66, s60, 288
    s_mul_i32 s64, {W_}, 24
    s_add_u32 s66, s66, s64
    s_lshl_b32 s66, s66, 10
    s_add_u32 s66, s66, {H_OFF}
    s_add_u32 s67, s66, 98304
    s_add_u32 s68, s67, 98304
    s_mul_i32 s69, {W_}, {12*40960}
    s_lshl_b32 s64, s61, 7
    s_add_u32 s69, s69, s64
    s_mul_i32 s70, {W_}, {5*40960}
    s_add_u32 s70, s70, s64
    s_mul_i32 s71, s60, {6*80*256}
    s_mul_i32 s64, {W_}, {5*1024}
    s_add_u32 s71, s71, s64
    s_add_u32 s71, s71, {O_OFF}
    s_mul_i32 s72, s60, 96
    s_lshr_b32 s72, s72, 7
    s_min_u32 s72, s72, 14
    s_lshl_b32 s72, s72, 4
    ''')
    for mt in range(6): a(f'v_add_u32 v{18+mt}, {20480*mt}, v4')
    NS = 17
    def issueW(step):
        slot = step % R
        for b in range(4):
            a(f's_add_u32 m0, s65, {slot*4096 + b*1024}')
            if step < 12:
                a(f'buffer_load_dwordx4 v{10+b}, {rsrc(S_W2)}, s69 offen lds')
            else:
                a(f'buffer_load_dwordx4 v{14+b}, {rsrc(S_WO)}, s70 offen lds')
            vm.issue(('S', step))
        a('s_add_u32 s69, s69, 40960' if step < 12 else 's_add_u32 s70, s70, 40960')
    def issueA(step):
        if step < 12:
            for aa in range(3):
                for u in range(2):
                    r0 = act(step, 2*aa + u)
                    a(f'buffer_load_dwordx4 v[{r0}:{r0+3}], v4, {rsrc(S_WS)}, s{66+aa} offen offset:{1024*u} sc1'); vm.issue(('S', step))
            a('s_add_u32 s66, s66, 2048\ns_add_u32 s67, s67, 2048\ns_add_u32 s68, s68, 2048')
        else:
            for mt in range(6):
                r0 = act(step, mt)
                a(f'buffer_load_dwordx4 v[{r0}:{r0+3}], v{18+mt}, {rsrc(S_WS)}, s71 offen sc1'); vm.issue(('S', step))
            a('s_add_u32 s71, s71, 1024')
    for st in range(D): issueW(st)
    a(f'''
    v_bfe_u32 v5, v1, 2, 2
    v_and_b32 v6, 3, v1
    v_lshl_add_u32 v7, v3, 2, v5
    v_bfe_u32 v8, v7, 1, 2
    v_lshlrev_b32 v7, 7, v7
    v_lshl_add_u32 v7, v6, 3, v7
    v_add_u32 v7, s65, v7
    ''')
    for nt in range(4):
        a(f'''
        v_xor_b32 v9, {nt}, v8
        v_lshl_add_u32 v{24+nt}, v9, 5, v7
        ''')
    for i in range(96): a(f'v_mov_b32 v{ACCG+i}, 0')
    poll(a, 's72', 8, 2, 'H', 5, 6)
    vm.ops = []
    rt('hflag', 5)
    for st in range(D): issueA(st)
    a(f'''
    v_lshlrev_b32 v5, 2, v2
    s_mul_i32 s64, s60, 384
    s_add_u32 s64, s64, {G_OFF}
    ''')
    GR = [28, 29, 30, 31, 8, 9]
    for mt in range(6):
        a(f'buffer_load_dword v{GR[mt]}, v5, {rsrc(S_WS)}, s64 offen offset:{64*mt} sc1'); vm.issue(('G',))
    def trreads(step):
        W = WFG[step % 2]; slot = step % R
        for nt in range(4):
            for u in range(2):
                a(f'ds_read_b64_tr_b16 v[{W+4*nt+2*u}:{W+4*nt+2*u+1}], v{24+nt} offset:{slot*4096 + u*2048}')
    trreads(0)
    vm.wait_for(a, lambda t: t == ('S', 0))
    for st in range(NS):
        if st + D == 12:
            poll(a, 's72', 8, 3, 'O', 5, 6)
            vm.ops = [('S', st), ('S', st + 1), ('S', st + 2)]
            rt('oflag', 5)
        if st + D < NS:
            issueA(st + D); issueW(st + D)
        nxt = st + 1 < NS
        if nxt:
            vm.wait_for(a, lambda t: t == ('S', st + 1))
            trreads(st + 1)
        if st < 12:
            for aa in range(3):
                x0 = act(st, 2*aa); x1 = act(st, 2*aa + 1)
                a(f'v_swap_b32 v{x0+2}, v{x1}')
                a(f'v_swap_b32 v{x0+3}, v{x1+1}')
        if st == 12:
            for mt in range(6): a(f'v_sub_f32 v{GR[mt]}, 1.0, v{GR[mt]}')
            for mt in range(6):
                for nt in range(4):
                    for r in range(4): a(f'v_mul_f32 v{acc(mt,nt)+r}, v{acc(mt,nt)+r}, v{GR[mt]}')
        W = WFG[st % 2]
        for nt in range(4):
            rem = (8 - 2*(nt+1)) + (8 if nxt else 0)
            a(f's_waitcnt lgkmcnt({min(rem, 15)})')
            for mt in range(6):
                x = act(st, mt)
                a(f'v_mfma_f32_16x16x32_bf16 v[{acc(mt,nt)}:{acc(mt,nt)+3}], v[{W+4*nt}:{W+4*nt+3}], v[{x}:{x+3}], v[{acc(mt,nt)}:{acc(mt,nt)+3}]')
    rt('g2loop', 5)
    a('s_barrier')
    for w in range(4):
        a(f's_cmp_eq_u32 {W_}, {w}')
        a(f's_cbranch_scc0 L_red{w}')
        for nt in range(4):
            if nt == w: continue
            si = w if w < nt else w - 1
            for mt in range(6):
                off = ((nt * 3 + si) * 6 + mt) * 1024
                if off < 65536: a(f'ds_write_b128 v4, v[{acc(mt,nt)}:{acc(mt,nt)+3}] offset:{off}')
                else:
                    a(f'v_add_u32 v6, 65536, v4')
                    a(f'ds_write_b128 v6, v[{acc(mt,nt)}:{acc(mt,nt)+3}] offset:{off-65536}')
        a('s_waitcnt lgkmcnt(0)')
        a('s_barrier')
        k = 0; order = []
        a(f'v_add_u32 v6, {w*3*6*1024}, v4')
        for si in range(3):
            for mt in range(6):
                a(f'ds_read_b128 v[{64+4*k}:{67+4*k}], v6 offset:{(si*6+mt)*1024}'); order.append(mt); k += 1
        for k, mt in enumerate(order):
            a(f's_waitcnt lgkmcnt({min(17-k, 15)})')
            for r in range(4):
                src_r = acc(mt, w) + r if k < 6 else 136 + 4*mt + r
                a(f'v_add_f32 v{136+4*mt+r}, v{src_r}, v{64+4*k+r}')
        a('s_branch L_redone')
        a('s_nop 7')
        a.label(f'L_red{w}')
    a.label('L_redone')
    a(f'''
    s_mul_i32 s64, s60, {96*1280}
    s_lshl_b32 s71, s61, 7
    s_add_u32 s64, s64, s71
    s_lshl_b32 s71, {W_}, 5
    s_add_u32 s64, s64, s71
    v_mul_u32_u24 v5, 1280, v2
    v_lshl_add_u32 v5, v3, 3, v5
    ''')
    for mt in range(6):
        A = 136 + 4*mt
        a(f'v_cvt_pk_bf16_f32 v{A}, v{A}, v{A+1}')
        a(f'v_cvt_pk_bf16_f32 v{A+1}, v{A+2}, v{A+3}')
        a(f'v_add_u32 v6, {20480*mt}, v5')
        a(f'buffer_store_dwordx2 v[{A}:{A+1}], v6, {rsrc(S_OUT)}, s64 offen')
    rt('end', 5)

def build(stamps=False):
    a = Asm(); a.name = 'k'
    C = Ctx()
    C.rt = RT(a, stamps, RT_LDS)
    C.rt.stride = 44
    C.kv_poll = kv_poll; C.kv_issue = kv_issue
    prologue(a, C)
    C.rt('start', 8)
    init_lds_consts(a)
    gemm1(a, C)
    signal(a, 2, 'B')
    C.rt('sigB', 8)
    a('''
    s_cmp_ge_u32 s3, 4
    s_cbranch_scc1 L_G2ROLE
    ''')
    n0 = C.rt.n
    attention(a, C)
    if stamps: C.rt.dump()
    a('s_branch L_END')
    a.label('L_G2ROLE')
    names_att = list(C.rt.names)
    C.rt.n = n0; C.rt.names = C.rt.names[:n0]
    gemm2(a, C)
    if stamps:
        C.rt.dump()
        print('ATT:', names_att, file=sys.stderr); print('G2:', C.rt.names, file=sys.stderr)
    a.label('L_END')
    a('s_endpgm')
    a.finalize()
    out = [f'''; fused persistent kernel v3
; @launch grid=(256,1,1) block=(512,1,1) lds={LDS_TOTAL}
.amdgcn_target "amdgcn-amd-amdhsa--gfx950"
.text
''']
    out.append(kernel_wrap(KN + '_kernel', a.text(), 256))
    out.append('.section .rodata,"a"\n.p2align 6\n')
    out.append(kd(KN + '_kernel', 256, 102))
    return ''.join(out)

if __name__ == '__main__':
    open(sys.argv[1], 'w').write(build(len(sys.argv) > 2))
```

```python
import sys, math, os
from asm import *
from gen1 import VM, f32bits, KN, kd, kernel_wrap
from stamp import RT
EXP = os.environ.get('EXP', '')

S_X, S_WQKV, S_W1, S_W2, S_WO, S_GW, S_OUT, S_WS, S_DBG = 8, 12, 16, 20, 24, 28, 32, 36, 88
QKV_OFF = 0; H_OFF = 0x800000; O_OFF = 0xE00000; G_OFF = 0x1100000; WS_SIZE = 0x1600000
CQ = math.log2(math.e) / math.sqrt(20.0)
LDS_TOTAL = 163840
SLOT = 32768
KV_BASE = 98304
ARR = 3104
OST = 81920
CNT_LDS = 163456
RT_LDS = 163488
OOB = 0x7ff00000
G2SEL = 7 if 'nog2' in EXP else 0
FLAG_OFF = 0x1200000
EPOCH_OFF = 0x11F0000
TOK_LDS = CNT_LDS + 24

def rsrc(d): return f's[{d}:{d+3}]'
class Ctx: pass
class LG:
    def __init__(self): self.ops = []
    def issue(self, tag): self.ops.append(tag)
    def wait_for(self, a, pred):
        last = -1
        for i, t in enumerate(self.ops):
            if pred(t): last = i
        assert last >= 0
        n = len(self.ops) - 1 - last
        a('s_waitcnt lgkmcnt(%d)' % min(n, 15))

def flag_store(a, val, v0=8):
    a(f'''
    v_mov_b32 v{v0+1}, {TOK_LDS}
    ds_read_b32 v{v0}, v{v0+1}
    s_lshl_b32 s64, s92, 7
    s_add_u32 s64, s64, {FLAG_OFF + (val-1)*256*128}
    v_mov_b32 v{v0+1}, s64
    s_waitcnt lgkmcnt(0)
    s_mov_b64 exec, 1
    buffer_store_dword v{v0}, v{v0+1}, {rsrc(S_WS)}, 0 offen sc1
    s_mov_b64 exec, -1
    ''')

def count_signal(a, cnt_off, last, val, tag, v0=8):
    a(f'''
    v_mov_b32 v{v0}, {CNT_LDS + cnt_off}
    v_mov_b32 v{v0+1}, 1
    s_mov_b64 exec, 1
    ds_add_rtn_u32 v{v0+2}, v{v0}, v{v0+1}
    s_waitcnt lgkmcnt(0)
    v_readfirstlane_b32 s64, v{v0+2}
    s_mov_b64 exec, -1
    s_cmp_lg_u32 s64, {last}
    s_cbranch_scc1 L_cs{tag}
    ''')
    flag_store(a, val, v0)
    a.label(f'L_cs{tag}')

def poll(a, first_sreg, ndw, minval, tag, va, vb):
    lab = f'L_poll{tag}'; done = f'L_polld{tag}'
    add = (0x80 - minval) * 0x01010101
    a(f'''
    v_lshlrev_b32 v{va}, 2, v1
    v_cmp_gt_u32 vcc, {ndw}, v1
    v_cndmask_b32 v{va}, 0, v{va}, vcc
    v_add_u32 v{va}, {first_sreg}, v{va}
    ''')
    a.label(lab)
    a(f'''
    buffer_load_dword v{vb}, v{va}, {rsrc(S_DBG)}, 0 offen sc1
    s_waitcnt vmcnt(0)
    v_add_u32 v{vb}, {add:#x}, v{vb}
    v_and_b32 v{vb}, 0x80808080, v{vb}
    v_cmp_ne_u32 vcc, 0x80808080, v{vb}
    s_cmp_eq_u64 vcc, 0
    s_cbranch_scc1 {done}
    s_sleep 1
    s_branch {lab}
    ''')
    a.label(done)

def poll_bcast(a, leader, first_idx_sreg, nflags, phase, tag, va, vb, lds_word, sleep=2):
    a(f'''
    s_cmp_lg_u32 s3, {leader}
    s_cbranch_scc1 L_pbw{tag}
    v_mov_b32 v{va}, {TOK_LDS}
    ds_read_b32 v{vb}, v{va}
    v_cmp_gt_u32 vcc, {nflags}, v1
    v_cndmask_b32 v{va}, 0, v1, vcc
    v_add_u32 v{va}, {first_idx_sreg}, v{va}
    v_lshlrev_b32 v{va}, 7, v{va}
    v_add_u32 v{va}, {FLAG_OFF + (phase-1)*256*128}, v{va}
    s_waitcnt lgkmcnt(0)
    v_readfirstlane_b32 s85, v{vb}
    ''')
    lab = f'L_poll{tag}'; done = f'L_polld{tag}'
    a.label(lab)
    a(f'''
    buffer_load_dword v{vb}, v{va}, {rsrc(S_WS)}, 0 offen sc1
    s_waitcnt vmcnt(0)
    v_cmp_ne_u32 vcc, s85, v{vb}
    s_cmp_eq_u64 vcc, 0
    s_cbranch_scc1 {done}
    s_sleep {sleep}
    s_branch {lab}
    ''')
    a.label(done)
    a(f'''
    v_mov_b32 v{va}, {lds_word}
    v_mov_b32 v{vb}, 1
    ds_write_b32 v{va}, v{vb}
    s_waitcnt lgkmcnt(0)
    s_branch L_pbd{tag}
    ''')
    a.label(f'L_pbw{tag}')
    a(f'v_mov_b32 v{va}, {lds_word}')
    a.label(f'L_pbs{tag}')
    a(f'''
    ds_read_b32 v{vb}, v{va}
    s_waitcnt lgkmcnt(0)
    v_readfirstlane_b32 s64, v{vb}
    s_cmp_lg_u32 s64, 0
    s_cbranch_scc1 L_pbd{tag}
    s_sleep 1
    s_branch L_pbs{tag}
    ''')
    a.label(f'L_pbd{tag}')

XF = 96; ACC = 64; WF = 32
def xf(s, t): return XF + (s * 2 + t) * 4
KVS = 40

def prologue(a, C):
    a(f'''
    s_cmp_ge_u32 s2, 256
    s_cbranch_scc1 L_END
    s_load_dwordx4 s[40:43], s[0:1], 0
    s_load_dwordx2 s[44:45], s[0:1], 16
    s_load_dwordx4 s[48:51], s[0:1], 32
    s_load_dwordx4 s[52:55], s[0:1], 48
    s_load_dwordx4 s[56:59], s[0:1], 64
    v_and_b32 v1, 63, v0
    v_lshrrev_b32 v2, 6, v0
    s_and_b32 s63, s2, 7
    s_lshr_b32 s64, s2, 3
    v_readfirstlane_b32 s3, v2
    s_lshr_b32 s93, s63, 2
    s_lshl_b32 s93, s93, 3
    s_and_b32 s65, s64, 7
    s_add_u32 s93, s93, s65
    s_lshr_b32 s62, s64, 3
    s_and_b32 s94, s63, 3
    s_lshl_b32 s94, s94, 2
    s_add_u32 s94, s94, s62
    s_lshl_b32 s92, s93, 4
    s_add_u32 s92, s92, s94
    ''')

def srd(a, d, lo, size):
    a(f'''
    s_mov_b32 s{d}, s{lo}
    s_and_b32 s{d+1}, s{lo+1}, 0xffff
    s_mov_b32 s{d+2}, {size}
    s_mov_b32 s{d+3}, 0x00020000
    ''')

def gemm1(a, C):
    rt = C.rt
    vm = VM(); lg = LG()
    def acc(t, nt): return ACC + (t * 4 + nt) * 4
    def wf(ksl, nt): return WF + (ksl * 4 + nt) * 4
    a('''
    v_lshrrev_b32 v6, 3, v1
    v_lshrrev_b32 v7, 4, v1
    v_and_b32 v8, 7, v1
    s_and_b32 s74, s3, 3
    s_lshl_b32 s64, s74, 5
    v_add_u32 v9, s64, v6
    v_mul_u32_u24 v4, 1280, v9
    v_xor_b32 v10, v8, v7
    v_lshl_add_u32 v4, v10, 4, v4
    v_xor_b32 v10, 4, v10
    v_add_u32 v9, 8, v9
    v_mul_u32_u24 v5, 1280, v9
    v_lshl_add_u32 v5, v10, 4, v5
    s_mul_i32 s66, s93, 163840
    s_add_u32 s75, s66, 20480
    s_lshr_b32 s64, s74, 1
    s_lshl_b32 s64, s64, 5
    v_add_u32 v9, s64, v6
    v_and_b32 v10, 2, v6
    v_xor_b32 v10, v8, v10
    s_and_b32 s65, s74, 1
    s_lshl_b32 s65, s65, 7
    v_lshl_add_u32 v13, v10, 4, s65
    v_xor_b32 v10, 4, v10
    v_lshl_add_u32 v14, v10, 4, s65
    v_mul_u32_u24 v2, 3840, v9
    v_add_u32 v2, v2, v13
    v_add_u32 v10, 8, v9
    v_mul_u32_u24 v3, 3840, v10
    v_add_u32 v3, v3, v14
    s_lshl_b32 s67, s94, 8
    s_lshl_b32 s68, s74, 12
    s_lshr_b32 s64, s74, 1
    s_lshl_b32 s69, s64, 13
    s_and_b32 s65, s74, 1
    s_lshl_b32 s65, s65, 12
    s_add_u32 s69, s69, s65
    s_add_u32 s69, s69, 16384
    s_cmp_eq_u32 s94, 15
    s_cselect_b32 s67, 0x7ff00000, s67
    s_cselect_b32 s70, 0, %d
    s_add_u32 s76, s67, %d
    s_waitcnt lgkmcnt(0)
    ''' % (64*3840, 16*3840))
    srd(a, S_X, 40, 2048 * 1280)
    srd(a, S_WQKV, 42, 640 * 3840)
    def dma_A(sg):
        slot = (sg % 4) * SLOT
        out = []
        for i in range(4):
            def f(i=i):
                a(f's_add_u32 m0, s68, {slot + 1024*i}')
                a(f'buffer_load_dwordx4 v{4+(i&1)}, {rsrc(S_X)}, s{66 if i < 2 else 75} offen lds'); vm.issue(('A', sg))
                if i == 3: a('s_add_u32 s66, s66, 128\ns_add_u32 s75, s75, 128')
            out.append(f)
        for i in range(4):
            def f(i=i):
                a(f's_add_u32 m0, s69, {slot + 1024*i}')
                a(f'buffer_load_dwordx4 v{2+(i&1)}, {rsrc(S_WQKV)}, s{67 if i < 2 else 76} offen lds'); vm.issue(('A', sg))
                if i == 3: a('s_add_u32 s67, s67, s70\ns_add_u32 s76, s76, s70')
            out.append(f)
        return out
    def lo4(fn, tag):
        a(f's_cmp_ge_u32 s3, 4\ns_cbranch_scc1 L_lo{tag}')
        fn()
        a.label(f'L_lo{tag}')
    lo4(lambda: [f() for sg in range(3) for f in dma_A(sg)], 'p')
    if 'cyc' not in EXP: rt('issued', 8)
    srd(a, S_W1, 48, 640 * 3072)
    srd(a, S_GW, 52, 1280)
    srd(a, S_WS, 58, WS_SIZE)
    srd(a, S_DBG, 56, 256)
    srd(a, S_WO, 44, 640 * 1280)
    srd(a, S_W2, 50, 1536 * 1280)
    srd(a, S_OUT, 54, 2048 * 1280)
    if 'tlb' in EXP:
        a(f'''
        s_cmp_lt_u32 s3, 4
        s_cbranch_scc1 L_tlbdone
        v_lshlrev_b32 v8, 16, v1
        v_add_u32 v8, 0x8000, v8
        s_cmp_eq_u32 s3, 4
        s_cbranch_scc0 L_tlb5
        buffer_load_dword v254, v8, {rsrc(S_WQKV)}, 0 offen
        buffer_load_dword v254, v8, {rsrc(S_W1)}, 0 offen
        buffer_load_dword v254, v8, {rsrc(S_X)}, 0 offen
        s_branch L_tlbdone
        ''')
        a.label('L_tlb5')
        a(f'''
        s_cmp_eq_u32 s3, 5
        s_cbranch_scc0 L_tlb6
        buffer_load_dword v254, v8, {rsrc(S_W2)}, 0 offen
        buffer_load_dword v254, v8, {rsrc(S_WO)}, 0 offen
        buffer_load_dword v254, v8, {rsrc(S_OUT)}, 0 offen
        s_branch L_tlbdone
        ''')
        a.label('L_tlb6')
        a(f'''
        s_sub_u32 s64, s3, 6
        s_mul_i32 s64, s64, {3*64*65536}
        buffer_load_dword v254, v8, {rsrc(S_WS)}, s64 offen sc1
        s_add_u32 s64, s64, {64*65536}
        buffer_load_dword v254, v8, {rsrc(S_WS)}, s64 offen sc1
        s_add_u32 s64, s64, {64*65536}
        buffer_load_dword v254, v8, {rsrc(S_WS)}, s64 offen sc1
        ''')
        a.label('L_tlbdone')
    a(f'''
    s_or_b32 s64, s2, s3
    s_cmp_lg_u32 s64, 0
    s_cbranch_scc1 L_notok
    v_mov_b32 v8, {EPOCH_OFF}
    buffer_load_dword v9, v8, {rsrc(S_WS)}, 0 offen sc1
    s_waitcnt vmcnt(0)
    v_add_u32 v9, 1, v9
    v_mov_b32 v10, v9
    v_mov_b32 v11, 0x5a5a5a5a
    v_mov_b32 v14, 0
    s_mov_b64 exec, 1
    buffer_store_dword v9, v8, {rsrc(S_WS)}, 0 offen sc1
    buffer_store_dwordx2 v[10:11], v14, {rsrc(S_DBG)}, 0 offen sc1
    s_mov_b64 exec, -1
    ''')
    a.label('L_notok')
    a(f'''
    s_cmp_ge_u32 s3, 6
    s_cbranch_scc1 L_noones
    s_lshl_b32 s64, s3, 9
    v_lshl_add_u32 v8, v1, 3, s64
    v_add_u32 v8, {KV_BASE + 20*ARR}, v8
    v_mov_b32 v10, 0x3f80
    v_mov_b32 v11, 0
    ds_write_b64 v8, v[10:11]
    v_mov_b32 v8, {CNT_LDS}
    v_mov_b32 v10, 0
    ds_write_b64 v8, v[10:11]
    ds_write_b64 v8, v[10:11] offset:8
    ds_write_b64 v8, v[10:11] offset:16
    ''')
    a.label('L_noones')
    for b in range(3):
        a(f'''
        v_add_u32 v8, {64*b}, v1
        v_mul_u32_u24 v9, 171, v8
        v_lshrrev_b32 v9, 10, v9
        v_mul_u32_u24 v10, 6, v9
        v_sub_u32 v10, v8, v10
        v_bfe_u32 v14, v9, 2, 2
        v_lshlrev_b32 v14, 3, v14
        v_lshrrev_b32 v15, 4, v9
        v_lshl_add_u32 v14, v15, 2, v14
        v_and_b32 v15, 3, v9
        v_add_u32 v14, v14, v15
        v_mul_u32_u24 v{11+b}, 3072, v14
        v_lshl_add_u32 v{11+b}, v10, 4, v{11+b}
        ''')
    a('''
    s_lshr_b32 s64, s3, 1
    s_mul_i32 s71, s64, 98304
    s_mul_i32 s65, s94, 192
    s_add_u32 s71, s71, s65
    s_and_b32 s65, s3, 1
    s_mul_i32 s65, s65, 96
    s_add_u32 s71, s71, s65
    s_mul_i32 s72, s3, 3072
    ''')
    def dma_B(j):
        slot = ((10 + j) % 4) * SLOT
        out = []
        for b in range(3):
            def f(b=b):
                a(f's_add_u32 m0, s72, {slot + 1024*b}')
                a(f'buffer_load_dwordx4 v{11+b}, {rsrc(S_W1)}, s71 offen lds'); vm.issue(('B', j))
                if b == 2: a(f's_add_u32 s71, s71, {128*3072}')
            out.append(f)
        return out
    a('''
    v_and_b32 v6, 15, v1
    v_lshrrev_b32 v8, 1, v6
    v_xor_b32 v9, v7, v8
    s_and_b32 s64, s3, 3
    s_lshl_b32 s64, s64, 12
    v_lshlrev_b32 v10, 7, v6
    v_add_u32 v10, s64, v10
    v_lshl_add_u32 v16, v9, 4, v10
    v_xor_b32 v9, 4, v9
    v_lshl_add_u32 v17, v9, 4, v10
    v_add_u32 v18, 0x10000, v16
    v_add_u32 v19, 0x10000, v17
    v_bfe_u32 v8, v1, 2, 2
    v_and_b32 v9, 3, v1
    v_lshrrev_b32 v10, 1, v8
    v_and_b32 v14, 1, v7
    v_lshl_or_b32 v10, v14, 1, v10
    v_lshl_add_u32 v14, v7, 3, v8
    v_lshlrev_b32 v14, 7, v14
    v_lshl_add_u32 v14, v9, 3, v14
    s_lshr_b32 s64, s3, 2
    s_lshl_b32 s65, s64, 12
    s_add_u32 s65, s65, 16384
    v_add_u32 v14, s65, v14
    ''')
    for nt in range(4):
        a(f'''
        v_xor_b32 v15, {nt}, v10
        v_lshl_add_u32 v{20+nt}, v15, 5, v14
        v_add_u32 v{24+nt}, 0x10000, v{20+nt}
        ''')
    a('''
    v_lshl_add_u32 v14, v7, 2, v8
    v_mul_u32_u24 v28, 96, v14
    v_lshl_add_u32 v28, v9, 3, v28
    s_mul_i32 s65, s64, 3072
    v_add_u32 v28, s65, v28
    v_add_u32 v29, 0x10000, v28
    v_lshlrev_b32 v30, 4, v1
    ''')
    for i in range(32): a(f'v_mov_b32 v{ACC+i}, 0')
    def xaddr(sg, ksl):
        sl = sg % 4
        return (16 + ksl + (2 if sl >= 2 else 0), (sl % 2) * SLOT)
    def waddr(sg, nt):
        sl = sg % 4
        return (20 + nt + (4 if sl >= 2 else 0), (sl % 2) * SLOT)
    def xread_list(sg):
        out = []
        for ksl in range(2):
            va, off = xaddr(sg, ksl)
            for t in range(2):
                r0 = xf(2*sg + ksl, t)
                out.append((f'ds_read_b128 v[{r0}:{r0+3}], v{va} offset:{off + 2048*t}', ('x', sg, ksl)))
        return out
    def wread(sg, ksl, nt):
        va, off = waddr(sg, nt)
        W = wf(ksl, nt)
        for u in range(2):
            a(f'ds_read_b64_tr_b16 v[{W+2*u}:{W+2*u+1}], v{va} offset:{off + ksl*8192 + 512*u}'); lg.issue(('w', sg, ksl, nt))
    nB = [0]
    a('v_mov_b32 v31, 0')
    def tok_early(tag):
        a(f'''
        s_cmp_lg_u32 s3, 0
        s_cbranch_scc1 L_te{tag}
        buffer_load_dwordx2 v[14:15], v31, {rsrc(S_DBG)}, 0 offen sc1
        ''')
        a.label(f'L_te{tag}')
    def next_dmas(sg):
        if sg + 3 < 10: return dma_A(sg + 3)
        r = dma_B(nB[0]); nB[0] += 1
        return r
    TOUCH = 'notouch' not in EXP
    if TOUCH:
        a('''
        s_lshr_b32 s64, s2, 3
        s_bfe_u32 s65, s2, 0x20001
        s_lshl_b32 s65, s65, 9
        s_lshl_b32 s73, s64, 4
        s_add_u32 s65, s65, s73
        v_and_b32 v8, 15, v1
        v_add_u32 v9, s65, v8
        v_mul_u32_u24 v9, 1280, v9
        v_lshl_add_u32 v9, v7, 7, v9
        v_lshrrev_b32 v10, 5, v1
        v_lshlrev_b32 v10, 6, v10
        v_bfe_u32 v14, v1, 4, 1
        v_add_u32 v10, v10, v14
        s_lshl_b32 s73, s64, 1
        v_add_u32 v10, s73, v10
        v_mul_u32_u24 v10, 3840, v10
        v_lshl_add_u32 v10, v8, 7, v10
        s_and_b32 s65, s2, 1
        s_lshl_b32 s73, s65, 11
        v_add_u32 v10, s73, v10
        ''')
        a('''
        s_and_b32 s73, s3, 3
        s_lshl_b32 s73, s73, 6
        v_add_u32 v8, s73, v1
        v_mul_u32_u24 v14, 0x1556, v8
        v_lshrrev_b32 v14, 16, v14
        v_mul_u32_u24 v15, 12, v14
        v_sub_u32 v15, v8, v15
        s_mul_i32 s64, s64, 20
        v_add_u32 v14, s64, v14
        v_mul_u32_u24 v14, 3072, v14
        v_lshl_add_u32 v14, v15, 7, v14
        s_mul_i32 s65, s65, 1536
        v_add_u32 v14, s65, v14
        v_cmp_gt_u32 vcc, 240, v8
        v_mov_b32 v15, 0x7fffff00
        v_cndmask_b32 v8, v15, v14, vcc
        ''')
    def only_wave(wv, txt, tag):
        a(f's_cmp_lg_u32 s3, {wv}')
        a(f's_cbranch_scc1 L_t{tag}')
        a(txt)
        a.label(f'L_t{tag}')
    def touches(sg, pfx):
        if not TOUCH: return
        TD = 255
        if sg == 0:
            only_wave(0, f'buffer_load_dword v{TD}, v9, {rsrc(S_X)}, 0 offen offset:{128*5}', pfx + 'x0')
            only_wave(2, f's_mov_b32 s73, {64*3840*5}\nbuffer_load_dword v{TD}, v10, {rsrc(S_WQKV)}, s73 offen', pfx + 'w0')
            only_wave(3, f's_mov_b32 s73, {64*3840*7}\nbuffer_load_dword v{TD}, v10, {rsrc(S_WQKV)}, s73 offen', pfx + 'w1')
        if sg == 1:
            only_wave(1, f'buffer_load_dword v{TD}, v9, {rsrc(S_X)}, 0 offen offset:{128*9}', pfx + 'x1')
            only_wave(4, f's_mov_b32 s73, {64*3840*9}\nbuffer_load_dword v{TD}, v10, {rsrc(S_WQKV)}, s73 offen', pfx + 'w2')
        if sg == 2:
            for wv in (5, 6, 7, 0):
                only_wave(wv, f'buffer_load_dword v{TD}, v8, {rsrc(S_W1)}, 0 offen', pfx + f'b{wv}')
    a('''
    s_cmp_eq_u32 s94, 15
    s_cbranch_scc1 L_GWG
    ''')
    vm_save = list(vm.ops)
    def all_touches(pfx, part):
        if not TOUCH: return
        TD = 255
        if part == 0:
            only_wave(4, f'buffer_load_dword v{TD}, v9, {rsrc(S_X)}, 0 offen offset:{128*4}', pfx + 'x0')
            only_wave(5, f's_mov_b32 s73, {64*3840*4}\nbuffer_load_dword v{TD}, v10, {rsrc(S_WQKV)}, s73 offen', pfx + 'w0')
        if part == 1:
            only_wave(6, f's_mov_b32 s73, {64*3840*6}\nbuffer_load_dword v{TD}, v10, {rsrc(S_WQKV)}, s73 offen', pfx + 'w1')
        if part == 2:
            only_wave(7, f'buffer_load_dword v{TD}, v9, {rsrc(S_X)}, 0 offen offset:{128*8}', pfx + 'x1')
            only_wave(4, f's_mov_b32 s73, {64*3840*8}\nbuffer_load_dword v{TD}, v10, {rsrc(S_WQKV)}, s73 offen', pfx + 'w2')
        if part == 3:
            a(f'buffer_load_dword v{TD}, v8, {rsrc(S_W1)}, 0 offen')
    def phaseA(role):
        nB[0] = 0
        lg.ops = []
        if role == 'lo':
            vm.ops = list(vm_save)
            vm.wait_for(a, lambda t: t == ('A', 0))
        else:
            vm.ops = []
        a('s_barrier')
        for txt, tag in xread_list(0): a(txt); lg.issue(tag)
        for ksl in range(2):
            for nt in range(4): wread(0, ksl, nt)
        for sg in range(10):
            if role == 'lo' and sg + 1 < 10: vm.wait_for(a, lambda t: t == ('A', sg + 1))
            if sg == 9: a('s_waitcnt lgkmcnt(0)')
            a('s_barrier')
            if sg == 5 and role == 'lo': tok_early('n')
            if role == 'hi' and sg < 4: all_touches('h', sg)
            if sg + 3 < 10: dm = dma_A(sg + 3) if role == 'lo' else []
            else:
                dm = dma_B(nB[0]); nB[0] += 1
            more = sg + 1 < 10
            xr = xread_list(sg + 1) if more else []
            pi = 0
            for ksl in range(2):
                for nt in range(4):
                    if pi < len(xr): a(xr[pi][0]); lg.issue(xr[pi][1])
                    lg.wait_for(a, lambda t: t in (('w', sg, ksl, nt), ('x', sg, ksl)))
                    if dm and (len(dm) > 4 or pi % 2 == 0): dm.pop(0)()
                    for t in range(2):
                        x = xf(2*sg + ksl, t)
                        a(f'v_mfma_f32_16x16x32_bf16 v[{acc(t,nt)}:{acc(t,nt)+3}], v[{wf(ksl,nt)}:{wf(ksl,nt)+3}], v[{x}:{x+3}], v[{acc(t,nt)}:{acc(t,nt)+3}]')
                    if more: wread(sg + 1, ksl, nt)
                    pi += 1
            while dm: dm.pop(0)()
            if 'astage' in EXP and sg in (0, 1, 2, 4, 6, 8):
                rt(f'A{sg}', 14 if sg < 5 else 8)
    a('s_cmp_ge_u32 s3, 4\ns_cbranch_scc1 L_AHI')
    n_rt0 = rt.n; names0 = list(rt.names)
    phaseA('lo')
    vm_lo = list(vm.ops)
    a('s_branch L_AEPI')
    a.label('L_AHI')
    rt.n = n_rt0; rt.names = list(names0)
    phaseA('hi')
    a.label('L_AEPI')
    vm.ops = [('B', 0)] * 3 + [('B', 1)] * 3 + [('B', 2)] * 3
    a(f'''
    v_lshlrev_b32 v8, 14, v7
    v_lshl_add_u32 v8, v6, 3, v8
    s_lshl_b32 s64, s94, 5
    s_lshr_b32 s65, s3, 2
    s_lshl_b32 s65, s65, 4
    s_add_u32 s64, s64, s65
    s_lshl_b32 s64, s64, 14
    s_lshl_b32 s65, s93, 7
    s_and_b32 s73, s3, 3
    s_lshl_b32 s73, s73, 5
    s_add_u32 s65, s65, s73
    s_lshl_b32 s65, s65, 3
    s_add_u32 s64, s64, s65
    s_add_u32 s64, s64, {QKV_OFF}
    s_cmp_lt_u32 s94, 5
    s_cselect_b32 s65, {f32bits(CQ):#x}, 1.0
    ''')
    for nt in range(4):
        for t in range(2):
            A = acc(t, nt)
            for r in range(4): a(f'v_mul_f32 v{A+r}, s65, v{A+r}')
            a(f'v_cvt_pk_bf16_f32 v{A}, v{A}, v{A+1}')
            a(f'v_cvt_pk_bf16_f32 v{A+1}, v{A+2}, v{A+3}')
            a(f'buffer_store_dwordx2 v[{A}:{A+1}], v8, {rsrc(S_WS)}, s64 offen offset:{128*t} sc1'); vm.issue(('ST',))
        a('s_add_u32 s64, s64, 65536')
    vm.wait_for(a, lambda t: t[0] == 'B')
    a('s_branch L_AJOIN')
    a.label('L_GWG')
    vm.ops = list(vm_save); nB[0] = 0
    a('v_lshlrev_b32 v20, 4, v7')
    GSAFE = True
    GACC = ACC
    def gw_wait(s):
        idx = max(i for i, t in enumerate(vm.ops) if t == ('GW', s))
        n = sum(1 for t in vm.ops[idx+1:] if t[0] != 'A')
        a(f's_waitcnt vmcnt({n})')
    for s in range(8):
        a(f'buffer_load_dwordx4 v[{WF+4*s}:{WF+4*s+3}], v20, {rsrc(S_GW)}, 0 offen offset:{64*s}'); vm.issue(('GW', s))
    for sg in range(10):
        vm.wait_for(a, lambda t: t == ('A', sg))
        a('s_barrier')
        if sg == 5: tok_early('g')
        if sg + 3 < 10: lo4(lambda: [f() for f in dma_A(sg + 3)], f'g{sg}')
        else:
            for f in dma_B(nB[0]): f()
            nB[0] += 1
        for txt, tag in xread_list(sg): a(txt)
        for ksl in range(2):
            s = 2*sg + ksl
            gw_wait(s)
            a(f's_waitcnt lgkmcnt({2 if ksl == 0 else 0})')
            for t in range(2):
                x = xf(s, t)
                a(f'v_mfma_f32_16x16x32_bf16 v[{GACC+4*t}:{GACC+4*t+3}], v[{WF+4*(s%8)}:{WF+4*(s%8)+3}], v[{x}:{x+3}], v[{GACC+4*t}:{GACC+4*t+3}]')
            if s + 8 < 20:
                a(f'buffer_load_dwordx4 v[{WF+4*(s%8)}:{WF+4*(s%8)+3}], v20, {rsrc(S_GW)}, 0 offen offset:{64*(s+8)}'); vm.issue(('GW', s + 8))
    a('s_nop 0')
    for t in range(2):
        z = GACC + 4*t
        a(f'''
        v_mul_f32 v{z}, {f32bits(-math.log2(math.e)):#x}, v{z}
        v_exp_f32 v{z}, v{z}
        v_add_f32 v{z}, 1.0, v{z}
        v_rcp_f32 v{z}, v{z}
        ''')
    a(f'''
    v_lshlrev_b32 v8, 2, v6
    v_cmp_gt_u32 vcc, 16, v1
    v_mov_b32 v9, 0x7fffff00
    v_cndmask_b32 v8, v9, v8, vcc
    s_lshl_b32 s64, s93, 7
    s_and_b32 s65, s3, 3
    s_lshl_b32 s65, s65, 5
    s_add_u32 s64, s64, s65
    s_lshl_b32 s64, s64, 2
    s_add_u32 s64, s64, {G_OFF}
    buffer_store_dword v{GACC}, v8, {rsrc(S_WS)}, s64 offen sc1
    buffer_store_dword v{GACC+4}, v8, {rsrc(S_WS)}, s64 offen offset:64 sc1
    s_waitcnt vmcnt(2)
    ''')
    a.label('L_AJOIN')
    a(f'''
    s_cmp_lg_u32 s3, 0
    s_cbranch_scc1 L_tokdone
    v_readfirstlane_b32 s64, v15
    s_cmp_lg_u32 s64, 0
    s_cbranch_scc1 L_tokok
    ''')
    a.label('L_tokpoll')
    a(f'''
    buffer_load_dwordx2 v[14:15], v31, {rsrc(S_DBG)}, 0 offen sc1
    s_waitcnt vmcnt(0)
    v_readfirstlane_b32 s64, v15
    s_cmp_lg_u32 s64, 0
    s_cbranch_scc0 L_tokpoll
    ''')
    a.label('L_tokok')
    a(f'''
    v_mov_b32 v8, {TOK_LDS}
    ds_write_b32 v8, v14
    ''')
    a.label('L_tokdone')
    a('s_waitcnt lgkmcnt(0)')
    a('s_barrier')
    rt('Ajoin', 8)
    vm.ops = [('ST',)]
    def accB(t, nt): return ACC + (t * 3 + nt) * 4
    def wfB(k, nt): return WF + ((k % 2) * 3 + nt) * 4
    def wreadB(k, nt):
        j = k // 4; ksl = k % 4
        sl = (10 + j) % 4
        va = 28 + (1 if sl >= 2 else 0)
        off = (sl % 2) * SLOT + ksl * 6144 + nt * 32
        W = wfB(k, nt)
        for u in range(2):
            a(f'ds_read_b64_tr_b16 v[{W+2*u}:{W+2*u+1}], v{va} offset:{off + 1536*u}'); lg.issue(('wb', k, nt))
    lg.ops = []
    for k in range(2):
        for nt in range(3): wreadB(k, nt)
    for i in range(24): a(f'v_mov_b32 v{ACC+i}, 0')
    pend = dma_B(3)
    def kv_list():
        out = []
        for i in range(8):
            def f(i=i):
                a(f's_mov_b32 m0, s{KVS+2*i}')
                a(f'buffer_load_dwordx4 v30, {rsrc(S_WS)}, s{KVS+2*i+1} offen sc1 lds'); vm.issue(('KV',))
            out.append(f)
        return out
    for k in range(20):
        if k == 5:
            vm.wait_for(a, lambda t: t == ('ST',))
            a('s_barrier')
            a('s_cmp_lg_u32 s3, 0\ns_cbranch_scc1 L_sigA')
            flag_store(a, 1)
            a.label('L_sigA')
            pend += dma_B(4)
        if k == 10:
            vm.wait_for(a, lambda t: t == ('B', 3))
            a('s_barrier')
            if 'cyc' not in EXP and 'astage' not in EXP: rt('k10', 8)
        if k == 14:
            vm.wait_for(a, lambda t: t == ('B', 4))
            a('s_barrier')
        for nt in range(3):
            lg.wait_for(a, lambda t: t == ('wb', k, nt))
            if pend and nt != 1: pend.pop(0)()
            for t in range(2):
                x = xf(k, t)
                a(f'v_mfma_f32_16x16x32_bf16 v[{accB(t,nt)}:{accB(t,nt)+3}], v[{wfB(k,nt)}:{wfB(k,nt)+3}], v[{x}:{x+3}], v[{accB(t,nt)}:{accB(t,nt)+3}]')
            if k + 2 < 20: wreadB(k + 2, nt)
    assert not pend
    if 'cyc' not in EXP and 'astage' not in EXP: rt('Bdone', 8)
    a(f'''
    s_lshl_b32 s64, s93, 2
    s_and_b32 s65, s3, 3
    s_add_u32 s64, s64, s65
    s_mul_i32 s64, s64, 96
    s_mul_i32 s65, s94, 6
    s_add_u32 s64, s64, s65
    s_lshr_b32 s65, s3, 2
    s_mul_i32 s65, s65, 3
    s_add_u32 s64, s64, s65
    s_lshl_b32 s64, s64, 10
    s_add_u32 s64, s64, {H_OFF}
    ''')
    for nt in range(3):
        D0 = WF + 4*nt
        for t in range(2):
            A = accB(t, nt)
            for r in range(4): a(f'v_max_f32 v{A+r}, 0, v{A+r}')
            a(f'v_cvt_pk_bf16_f32 v{D0+2*t}, v{A}, v{A+1}')
            a(f'v_cvt_pk_bf16_f32 v{D0+2*t+1}, v{A+2}, v{A+3}')
        a(f'buffer_store_dwordx4 v[{D0}:{D0+3}], v30, {rsrc(S_WS)}, s64 offen offset:{1024*nt} sc1'); vm.issue(('STH',))
    a('s_barrier')
    if 'astage' not in EXP: rt('Bbar', 8)

def attention(a, C):
    rt = C.rt
    vm = VM()
    KF = 32; QR = [104, 232]
    a('''
    s_sub_i32 s64, s93, 2
    s_max_i32 s64, s64, 0
    s_lshl_b32 s64, s64, 4
    v_lshlrev_b32 v30, 4, v1
    ''')
    a(f'''
    s_lshr_b32 s65, s3, 1
    s_mul_i32 s65, s65, 160
    s_add_u32 s65, s65, 160
    s_mul_i32 s70, s94, 10
    s_add_u32 s65, s65, s70
    s_and_b32 s70, s3, 1
    s_mul_i32 s70, s70, 5
    s_add_u32 s65, s65, s70
    s_lshl_b32 s65, s65, 14
    s_mul_i32 s66, s3, {5*ARR}
    s_add_u32 s66, s66, {KV_BASE}
    ''')
    for b in range(3):
        a(f'''
        s_add_u32 s70, s93, {b}
        s_sub_i32 s70, s70, 2
        s_lshl_b32 s71, s70, 10
        s_add_u32 s71, s71, s65
        s_cmp_lt_i32 s70, 0
        s_cselect_b32 s{67+b}, {OOB:#x}, s71
        s_cselect_b32 s{60+b}, 0, 16384
        ''')
    a('s_mov_b32 s59, s64')
    a('s_waitcnt vmcnt(0)')
    count_signal(a, 4, 7, 2, 'B1')
    poll_bcast(a, 0, 's59', 48, 1, 'KV', 8, 9, CNT_LDS + 12)
    if 'astage' not in EXP: rt('qkvflag', 8)
    for c in range(5):
        for b in range(3):
            a(f's_add_u32 m0, s66, {c*ARR + b*1024}')
            a(f'buffer_load_dwordx4 v30, {rsrc(S_WS)}, s{67+b} offen sc1 lds'); vm.issue(('KV',))
            a(f's_add_u32 s{67+b}, s{67+b}, s{60+b}')

    SB = [112, 128, 144]; NEGM = 160; PB = [176, 184]; VFB = [192, 200]; O = 208; M8 = 224
    a(f'''
    s_lshl_b32 s74, s93, 7
    s_lshl_b32 s70, s3, 5
    s_add_u32 s74, s74, s70
    v_and_b32 v5, 31, v1
    v_lshrrev_b32 v6, 5, v1
    v_add_u32 v7, s74, v5
    v_lshlrev_b32 v8, 3, v7
    v_lshl_add_u32 v9, v6, 15, v8
    v_add_u32 v10, 65536, v8
    v_cmp_eq_u32 vcc, 0, v6
    v_mov_b32 v11, 0x7fffff00
    v_cndmask_b32 v10, v11, v10, vcc
    s_mul_i32 s70, s94, {10*16384}
    s_add_u32 s70, s70, {QKV_OFF}
    ''')
    for hh in range(2):
        Q0 = QR[hh]
        a(f'''
        s_add_u32 s71, s70, 16384
        buffer_load_dwordx2 v[{Q0}:{Q0+1}], v9, {rsrc(S_WS)}, s70 offen sc1
        buffer_load_dwordx2 v[{Q0+2}:{Q0+3}], v9, {rsrc(S_WS)}, s71 offen sc1
        buffer_load_dwordx2 v[{Q0+4}:{Q0+5}], v10, {rsrc(S_WS)}, s70 offen sc1
        s_add_u32 s70, s70, {5*16384}
        ''')
        for _ in range(3): vm.issue(('Q', hh))
    a(f'''
    v_lshlrev_b32 v12, 2, v7
    s_mov_b32 s70, {G_OFF}
    buffer_load_dword v13, v12, {rsrc(S_WS)}, s70 offen sc1
    v_mov_b32 v11, 0x3f80
    '''); vm.issue(('G',))
    for hh in range(2):
        a(f'v_cndmask_b32 v{QR[hh]+6}, 0, v11, vcc')
        a(f'v_mov_b32 v{QR[hh]+7}, 0')
    a(f'''
    s_lshl_b32 s70, s3, 8
    s_add_u32 s70, s70, {KV_BASE}
    v_lshlrev_b32 v19, 3, v5
    v_add_u32 v19, s70, v19
    v_add_u32 v20, {4*ARR}, v19
    v_mul_u32_u24 v21, {2*ARR}, v6
    v_add_u32 v19, v19, v21
    ''')
    def kreads(hh):
        ko = hh * 5 * ARR
        for kb in (0, 8, 1, 2, 3, 4, 5, 6, 7):
            a(f'ds_read_b64 v[{KF+8*kb}:{KF+8*kb+1}], v19 offset:{ko + kb*256}')
            a(f'ds_read_b64 v[{KF+8*kb+2}:{KF+8*kb+3}], v19 offset:{ko + kb*256 + ARR}')
            a(f'ds_read_b64 v[{KF+8*kb+4}:{KF+8*kb+5}], v20 offset:{ko + kb*256}')
    MS_PLACEHOLDER = None
    MS = [40 + 2*i for i in range(10)] + [76 + 2*i for i in range(6)]
    a('''
    v_lshlrev_b32 v14, 2, v6
    v_sub_u32 v14, v5, v14
    ''')
    for r in range(16):
        c = 8*(r >> 2) + (r & 3)
        a(f'v_cmp_le_i32 s[{MS[r]}:{MS[r]+1}], {c}, v14')
    a('v_mov_b32 v15, 0xffff')
    a('v_mov_b32 v16, 0xffff0000')
    for i in range(8):
        a(f'''
        v_cndmask_b32 v17, 0, v15, s[{MS[2*i]}:{MS[2*i]+1}]
        v_cndmask_b32 v18, 0, v16, s[{MS[2*i+1]}:{MS[2*i+1]+1}]
        v_or_b32 v{M8+i}, v17, v18
        ''')
    a('''
    s_lshr_b32 s75, s74, 5
    s_sub_i32 s75, 8, s75
    s_max_i32 s75, s75, 0
    ''')
    for kb in range(9):
        a(f'''
        s_cmp_gt_u32 s75, {kb}
        s_cselect_b32 s70, 0xf149, 0
        v_mov_b32 v{KF+8*kb+6}, s70
        v_mov_b32 v{KF+8*kb+7}, 0
        ''')
    a(f'''
    s_lshl_b32 s70, s3, 8
    s_add_u32 s70, s70, {KV_BASE}
    v_bfe_u32 v21, v1, 4, 1
    v_bfe_u32 v22, v1, 2, 2
    v_and_b32 v23, 3, v1
    v_lshl_add_u32 v23, v21, 2, v23
    v_lshl_add_u32 v22, v6, 2, v22
    v_lshlrev_b32 v22, 3, v22
    v_add_u32 v22, s70, v22
    v_cmp_gt_u32 vcc, 5, v23
    v_add_u32 v24, 10, v23
    v_mov_b32 v25, 20
    v_cndmask_b32 v24, v25, v24, vcc
    v_add_u32 v26, 15, v23
    v_cndmask_b32 v26, v25, v26, vcc
    v_mul_u32_u24 v24, {ARR}, v24
    v_mul_u32_u24 v26, {ARR}, v26
    v_add_u32 v23, v22, v26
    v_add_u32 v22, v22, v24
    s_mul_i32 s70, s3, 2560
    s_add_u32 s70, s70, {OST}
    v_mul_u32_u24 v24, 80, v5
    v_add_u32 v24, s70, v24
    v_lshl_add_u32 v24, v6, 3, v24
    ''')
    MX = 28
    vm.wait_for(a, lambda t: t == ('KV',))
    a(f'''
    v_mov_b32 v8, {CNT_LDS + 8}
    v_mov_b32 v9, 1
    s_mov_b64 exec, 1
    ds_add_u32 v8, v9
    s_mov_b64 exec, -1
    ''')
    a.label('L_kvsync')
    a(f'''
    ds_read_b32 v9, v8
    s_waitcnt lgkmcnt(0)
    v_readfirstlane_b32 s70, v9
    s_cmp_lt_u32 s70, 4
    s_cbranch_scc1 L_kvsync
    ''')
    kreads(0)
    for hh in range(2):
        Q0 = QR[hh]; Q1 = Q0 + 4
        vm.wait_for(a, lambda t: t == ('Q', hh))
        a('s_waitcnt lgkmcnt(0)')
        def s1(dst, kb, c): return f'v_mfma_f32_32x32x16_bf16 v[{dst}:{dst+15}], v[{KF+8*kb}:{KF+8*kb+3}], v[{Q0}:{Q0+3}], {c}'
        def s2(dst, kb): return f'v_mfma_f32_32x32x16_bf16 v[{dst}:{dst+15}], v[{KF+8*kb+4}:{KF+8*kb+7}], v[{Q1}:{Q1+3}], v[{dst}:{dst+15}]'
        def smfma(dst, kb, c): a(s1(dst, kb, c)); a(s2(dst, kb))
        def maxes(S, first):
            for i in range(8):
                if first and i == 0: a(f'v_max_f32 v{MX}, v{S}, v{S+1}')
                else: a(f'v_max3_f32 v{MX}, v{MX}, v{S+2*i}, v{S+2*i+1}')
        bufof = {1: SB[2], 2: SB[1]}
        rot = [SB[0], SB[2], SB[1]]
        for kb in range(3, 8): bufof[kb] = rot[(kb - 3) % 3]
        smfma(SB[0], 0, '0'); smfma(SB[1], 8, '0'); smfma(SB[2], 1, '0')
        for r in range(16):
            a(f'v_cndmask_b32 v{SB[0]+r}, v{SB[0]+r}, v{SB[1]+r}, s[{MS[r]}:{MS[r]+1}]')
        smfma(SB[1], 2, '0')
        maxes(SB[0], True)
        for kb in range(1, 8):
            if kb + 2 <= 7: smfma(bufof[kb + 2], kb + 2, '0')
            maxes(bufof[kb], False)
        va = 22 + hh
        def vread_list(kb, VF):
            return [f'ds_read_b64_tr_b16 v[{VF+4*aa+2*u}:{VF+4*aa+2*u+1}], v{va} offset:{kb*256 + aa*128 + u*64}' for aa in range(2) for u in range(2)]
        for x in vread_list(0, VFB[0]) + vread_list(8, VFB[1]): a(x)
        a(f'''
        v_mov_b32 v29, v{MX}
        v_mov_b32 v30, v{MX}
        v_permlane32_swap_b32 v29, v30
        v_max_f32 v{MX}, v29, v30
        v_sub_f32 v{MX}, 0, v{MX}
        ''')
        for r in range(16): a(f'v_mov_b32 v{NEGM+r}, v{MX}')
        CN = f'v[{NEGM}:{NEGM+15}]'
        def pv1(VF, Pd, aa, c): return f'v_mfma_f32_32x32x16_bf16 v[{O}:{O+15}], v[{VF+4*aa}:{VF+4*aa+3}], v[{Pd+4*aa}:{Pd+4*aa+3}], {c}'
        OC = f'v[{O}:{O+15}]'
        def exp_list(S, Pd):
            out = []
            for i in range(0, 8, 2):
                out += [f'v_exp_f32 v{S+2*i}, v{S+2*i}', f'v_exp_f32 v{S+2*i+1}, v{S+2*i+1}', f'v_exp_f32 v{S+2*i+2}, v{S+2*i+2}', f'v_exp_f32 v{S+2*i+3}, v{S+2*i+3}',
                        f'v_cvt_pk_bf16_f32 v{Pd+i}, v{S+2*i}, v{S+2*i+1}', f'v_cvt_pk_bf16_f32 v{Pd+i+1}, v{S+2*i+2}, v{S+2*i+3}']
            return out
        def interleave(valu, inserts):
            for i, x in enumerate(valu):
                for y in inserts.get(i, []): a(y)
                a(x)
            for y in inserts.get(len(valu), []): a(y)
        if 'cyc' in EXP and hh == 1: rt('c_p1', 8)
        smfma(SB[0], 0, CN); smfma(SB[1], 8, CN); smfma(SB[2], 1, CN)
        for r in range(16):
            a(f'v_cndmask_b32 v{SB[0]+r}, v{SB[0]+r}, v{SB[1]+r}, s[{MS[r]}:{MS[r]+1}]')
        interleave(exp_list(SB[0], PB[0]), {2: [s1(SB[1], 2, CN)], 10: [s2(SB[1], 2)]})
        for i in range(8):
            a(f'v_and_b32 v{PB[1]+i}, v{PB[0]+i}, v{M8+i}')
            a(f'v_xor_b32 v{PB[0]+i}, v{PB[0]+i}, v{PB[1]+i}')
        PX = 240
        Pof = {1: PX}
        for kb in range(2, 8): Pof[kb] = PB[kb % 2]
        a('s_waitcnt lgkmcnt(0)')
        interleave(exp_list(bufof[1], Pof[1]), {0: [pv1(VFB[0], PB[0], 0, '0')], 5: [pv1(VFB[0], PB[0], 1, OC)], 10: [pv1(VFB[1], PB[1], 0, OC)], 15: [pv1(VFB[1], PB[1], 1, OC)],
                    18: vread_list(1, VFB[0]), 20: [s1(bufof[3], 3, CN)], 24: [s2(bufof[3], 3)]})
        for kb in range(2, 8):
            prevV = VFB[(kb - 1 + 1) % 2]
            curV = VFB[(kb + 1) % 2]
            ins = {0: vread_list(kb, curV), 3: ['s_waitcnt lgkmcnt(4)', pv1(prevV, Pof[kb-1], 0, OC)], 9: [pv1(prevV, Pof[kb-1], 1, OC)]}
            if kb + 2 <= 7:
                ins[15] = [s1(bufof[kb+2], kb+2, CN)]; ins[21] = [s2(bufof[kb+2], kb+2)]
            interleave(exp_list(bufof[kb], Pof[kb]), ins)
        lastV = VFB[(7 + 1) % 2]
        if hh == 0: kreads(1)
        a('s_waitcnt lgkmcnt(%d)' % (15 if hh == 0 else 0))
        if hh == 0: a('s_nop 0')
        a(pv1(lastV, Pof[7], 0, OC)); a(pv1(lastV, Pof[7], 1, OC))
        a(f'''
        v_mov_b32 v29, v{O+8}
        v_mov_b32 v30, v{O+8}
        v_permlane32_swap_b32 v29, v30
        v_rcp_f32 v30, v30
        ''')
        if hh == 0: vm.wait_for(a, lambda t: t == ('G',))
        a('v_mul_f32 v30, v30, v13')
        for i in range(3):
            for r in range(4): a(f'v_mul_f32 v{O+4*i+r}, v{O+4*i+r}, v30')
            a(f'v_cvt_pk_bf16_f32 v{O+4*i}, v{O+4*i}, v{O+4*i+1}')
            a(f'v_cvt_pk_bf16_f32 v{O+4*i+1}, v{O+4*i+2}, v{O+4*i+3}')
        a(f'ds_write_b64 v24, v[{O}:{O+1}] offset:{40*hh}')
        a(f'ds_write_b64 v24, v[{O+4}:{O+5}] offset:{40*hh+16}')
        a(f'''
        s_mov_b64 exec, 0xffffffff
        ds_write_b64 v24, v[{O+8}:{O+9}] offset:{40*hh+32}
        s_mov_b64 exec, -1
        ''')
        if 'astage' not in EXP: rt(f'att{hh}', 8)
        if 'cyc' in EXP: rt(f'c_att{hh}', 8)
    a(f'''
    s_waitcnt lgkmcnt(0)
    s_lshl_b32 s70, s93, 3
    s_lshl_b32 s64, s3, 1
    s_add_u32 s70, s70, s64
    s_mul_i32 s70, s70, {80*256}
    s_mul_i32 s64, s94, 1280
    s_add_u32 s70, s70, s64
    s_add_u32 s70, s70, {O_OFF}
    s_mul_i32 s64, s3, 2560
    s_add_u32 s64, s64, {OST}
    ''')
    for i in range(3):
        a(f'''
        v_add_u32 v2, {64*i}, v1
        v_and_b32 v3, 15, v2
        v_lshrrev_b32 v4, 4, v2
        v_cmp_le_u32 vcc, 5, v4
        v_cndmask_b32 v5, 0, 1, vcc
        v_mul_u32_u24 v6, 5, v5
        v_sub_u32 v6, v4, v6
        v_lshl_add_u32 v9, v5, 4, v3
        v_mul_u32_u24 v9, 80, v9
        v_lshl_add_u32 v9, v6, 4, v9
        v_add_u32 v9, s64, v9
        ds_read_b128 v[{32+4*i}:{35+4*i}], v9
        v_mul_u32_u24 v{10+i}, 20480, v5
        v_lshl_add_u32 v6, v6, 4, v3
        v_lshl_add_u32 v{10+i}, v6, 4, v{10+i}
        ''')
    a(f'''
    v_cmp_le_u32 vcc, 32, v1
    v_mov_b32 v9, 0x7fffff00
    v_cndmask_b32 v12, v12, v9, vcc
    ''')
    for i in range(3):
        a(f's_waitcnt lgkmcnt({2-i})')
        a(f'buffer_store_dwordx4 v[{32+4*i}:{35+4*i}], v{10+i}, {rsrc(S_WS)}, s70 offen sc1')
    a('s_waitcnt vmcnt(0)')
    count_signal(a, 0, 3, 3, 'O')
    if 'astage' not in EXP: rt('attdone', 8)

def gemm2(a, C):
    rt = C.rt
    vm = VM()
    D = 3; R = 5
    DW = 4
    W_ = 's87'
    ACCG = 160; ACT = 64; WFG = [32, 48]
    def acc(mt, nt): return ACCG + (mt * 4 + nt) * 4
    def act(step, i): return ACT + (step % (D + 1)) * 24 + 4 * i
    a(f'''
    s_sub_u32 s87, s3, 4
    s_and_b32 s62, s2, 7
    s_lshr_b32 s63, s2, 3
    s_mul_i32 s64, s63, 52
    s_lshr_b32 s64, s64, 8
    s_mul_i32 s65, s64, 5
    s_sub_u32 s65, s63, s65
    s_and_b32 s61, s62, 1
    s_mul_i32 s61, s61, 5
    s_add_u32 s61, s61, s65
    s_lshr_b32 s62, s62, 1
    s_mul_i32 s60, s62, 6
    s_cmp_eq_u32 s62, 3
    s_cselect_b32 s65, 17, s60
    s_mov_b32 s60, s65
    s_cmp_ge_u32 s62, 2
    s_cselect_b32 s65, 5, 6
    s_cmp_ge_u32 s64, s65
    s_cselect_b32 s86, 1, 0
    s_add_u32 s60, s60, s64
    s_cmp_eq_u32 s86, {G2SEL}
    s_cbranch_scc1 L_g2_active
    s_waitcnt vmcnt(0)
    ''')
    count_signal(a, 4, 7, 2, 'B2')
    a('s_branch L_END')
    a.label('L_g2_active')
    a(f'''
    v_and_b32 v2, 15, v1
    v_lshrrev_b32 v3, 4, v1
    v_lshlrev_b32 v4, 4, v1
    v_lshrrev_b32 v5, 3, v1
    v_and_b32 v6, 7, v1
    v_lshlrev_b32 v7, 1, v3
    v_xor_b32 v6, v6, v7
    v_lshlrev_b32 v6, 4, v6
    ''')
    for b in range(4):
        a(f'''
        v_add_u32 v7, {8*b}, v5
        v_mul_u32_u24 v{10+b}, 1280, v7
        v_add_u32 v{10+b}, v{10+b}, v6
        ''')
    a(f'''
    s_mul_i32 s65, {W_}, {R*4096}
    s_mul_i32 s69, {W_}, {12*40960}
    s_lshl_b32 s64, s61, 7
    s_add_u32 s69, s69, s64
    s_mul_i32 s70, {W_}, {5*40960}
    s_add_u32 s70, s70, s64
    ''')
    NS = 17
    def W_list(step):
        slot = step % R
        out = []
        for b in range(4):
            def f(b=b):
                a(f's_add_u32 m0, s65, {slot*4096 + b*1024}')
                if step < 12: a(f'buffer_load_dwordx4 v{10+b}, {rsrc(S_W2)}, s69 offen lds')
                else: a(f'buffer_load_dwordx4 v{14+b}, {rsrc(S_WO)}, s70 offen lds')
                vm.issue(('W', step))
                if b == 3: a('s_add_u32 s69, s69, 40960' if step < 12 else 's_add_u32 s70, s70, 40960')
            out.append(f)
        return out
    def A_list(step):
        out = []
        if step < 12:
            for aa in range(3):
                for u in range(2):
                    def f(aa=aa, u=u):
                        r0 = act(step, 2*aa + u)
                        a(f'buffer_load_dwordx4 v[{r0}:{r0+3}], v4, {rsrc(S_WS)}, s{66+aa} offen offset:{1024*u} sc1'); vm.issue(('A', step))
                        if u == 1: a(f's_add_u32 s{66+aa}, s{66+aa}, 2048')
                    out.append(f)
        else:
            for mt in range(6):
                def f(mt=mt):
                    r0 = act(step, mt)
                    a(f'buffer_load_dwordx4 v[{r0}:{r0+3}], v{18+mt}, {rsrc(S_WS)}, s71 offen sc1'); vm.issue(('A', step))
                    if mt == 5: a('s_add_u32 s71, s71, 1024')
                out.append(f)
        return out
    a('s_waitcnt vmcnt(0)')
    count_signal(a, 4, 7, 2, 'B3', 7)
    for st in range(DW):
        for f in W_list(st): f()
    for b in range(4):
        a(f'''
        v_add_u32 v7, {8*b}, v5
        v_bfe_u32 v8, v7, 2, 2
        v_lshlrev_b32 v8, 3, v8
        v_lshrrev_b32 v9, 4, v7
        v_lshl_add_u32 v8, v9, 2, v8
        v_and_b32 v9, 3, v7
        v_add_u32 v8, v8, v9
        v_mul_u32_u24 v{14+b}, 1280, v8
        v_add_u32 v{14+b}, v{14+b}, v6
        ''')
    a(f'''
    s_mul_i32 s66, s60, 288
    s_mul_i32 s64, {W_}, 24
    s_add_u32 s66, s66, s64
    s_lshl_b32 s66, s66, 10
    s_add_u32 s66, s66, {H_OFF}
    s_add_u32 s67, s66, 98304
    s_add_u32 s68, s67, 98304
    s_mul_i32 s71, s60, {6*80*256}
    s_mul_i32 s64, {W_}, {5*1024}
    s_add_u32 s71, s71, s64
    s_add_u32 s71, s71, {O_OFF}
    s_mul_i32 s72, s60, 96
    s_lshr_b32 s72, s72, 7
    s_min_u32 s72, s72, 14
    s_lshl_b32 s72, s72, 4
    v_bfe_u32 v5, v1, 2, 2
    v_and_b32 v6, 3, v1
    v_lshl_add_u32 v7, v3, 2, v5
    v_bfe_u32 v8, v7, 1, 2
    v_lshlrev_b32 v7, 7, v7
    v_lshl_add_u32 v7, v6, 3, v7
    v_add_u32 v7, s65, v7
    ''')
    for mt in range(6): a(f'v_add_u32 v{18+mt}, {20480*mt}, v4')
    for nt in range(4):
        a(f'''
        v_xor_b32 v9, {nt}, v8
        v_lshl_add_u32 v{24+nt}, v9, 5, v7
        ''')
    for i in range(96): a(f'v_mov_b32 v{ACCG+i}, 0')
    poll_bcast(a, 4, 's72', 32, 2, 'H', 5, 6, CNT_LDS + 16)
    (rt('hflag', 5) if 'astage' not in EXP else None)
    for st in range(D):
        for f in A_list(st): f()
    a(f'''
    v_lshlrev_b32 v5, 2, v2
    s_mul_i32 s64, s60, 384
    s_add_u32 s64, s64, {G_OFF}
    ''')
    GR = [28, 29, 30, 31, 8, 9]
    for mt in range(6):
        a(f'buffer_load_dword v{GR[mt]}, v5, {rsrc(S_WS)}, s64 offen offset:{64*mt} sc1'); vm.issue(('G',))
    def tr_list(step):
        W = WFG[step % 2]; slot = step % R
        return [f'ds_read_b64_tr_b16 v[{W+4*nt+2*u}:{W+4*nt+2*u+1}], v{24+nt} offset:{slot*4096 + u*2048}' for nt in range(4) for u in range(2)]
    for x in tr_list(0): a(x)
    for st in range(NS):
        if st + D == 12:
            poll_bcast(a, 4, 's72', 32, 3, 'O', 5, 6, CNT_LDS + 20)
            (rt('oflag', 5) if 'astage' not in EXP else None)
        pend = []
        if st + D < NS: pend += A_list(st + D)
        if st + DW < NS: pend += W_list(st + DW)
        nxt = st + 1 < NS
        vm.wait_for(a, lambda t: t == ('A', st) or (nxt and t == ('W', st + 1)))
        trs = tr_list(st + 1) if nxt else []
        if st < 12:
            for aa in range(3):
                x0 = act(st, 2*aa); x1 = act(st, 2*aa + 1)
                a(f'v_swap_b32 v{x0+2}, v{x1}')
                a(f'v_swap_b32 v{x0+3}, v{x1+1}')
        if st == 12:
            for mt in range(6): a(f'v_sub_f32 v{GR[mt]}, 1.0, v{GR[mt]}')
            for mt in range(6):
                for nt in range(4):
                    for r in range(4): a(f'v_mul_f32 v{acc(mt,nt)+r}, v{acc(mt,nt)+r}, v{GR[mt]}')
        W = WFG[st % 2]
        a('s_waitcnt lgkmcnt(0)')
        i = 0
        for nt in range(4):
            for mt in range(6):
                x = act(st, mt)
                a(f'v_mfma_f32_16x16x32_bf16 v[{acc(mt,nt)}:{acc(mt,nt)+3}], v[{W+4*nt}:{W+4*nt+3}], v[{x}:{x+3}], v[{acc(mt,nt)}:{acc(mt,nt)+3}]')
                if i % 2 == 1 and pend: pend.pop(0)()
                if i % 3 == 0 and trs: a(trs.pop(0))
                i += 1
        while trs: a(trs.pop(0))
        while pend: pend.pop(0)()
    (rt('g2loop', 5) if 'astage' not in EXP else None)
    a('s_barrier')
    for w in range(4):
        a(f's_cmp_eq_u32 {W_}, {w}')
        a(f's_cbranch_scc0 L_red{w}')
        for nt in range(4):
            if nt == w: continue
            si = w if w < nt else w - 1
            for mt in range(6):
                off = ((nt * 3 + si) * 6 + mt) * 1024
                if off < 65536: a(f'ds_write_b128 v4, v[{acc(mt,nt)}:{acc(mt,nt)+3}] offset:{off}')
                else:
                    a(f'v_add_u32 v6, 65536, v4')
                    a(f'ds_write_b128 v6, v[{acc(mt,nt)}:{acc(mt,nt)+3}] offset:{off-65536}')
        a('s_waitcnt lgkmcnt(0)')
        a('s_barrier')
        k = 0; order = []
        a(f'v_add_u32 v6, {w*3*6*1024}, v4')
        for si in range(3):
            for mt in range(6):
                a(f'ds_read_b128 v[{64+4*k}:{67+4*k}], v6 offset:{(si*6+mt)*1024}'); order.append(mt); k += 1
        for k, mt in enumerate(order):
            a(f's_waitcnt lgkmcnt({min(17-k, 15)})')
            for r in range(4):
                src_r = acc(mt, w) + r if k < 6 else 136 + 4*mt + r
                a(f'v_add_f32 v{136+4*mt+r}, v{src_r}, v{64+4*k+r}')
        a('s_branch L_redone')
        a('s_nop 7')
        a.label(f'L_red{w}')
    a.label('L_redone')
    a(f'''
    s_mul_i32 s64, s60, {96*1280}
    s_lshl_b32 s71, s61, 7
    s_add_u32 s64, s64, s71
    s_lshl_b32 s71, {W_}, 5
    s_add_u32 s64, s64, s71
    v_mul_u32_u24 v5, 1280, v2
    v_lshl_add_u32 v5, v3, 3, v5
    ''')
    for mt in range(6):
        A = 136 + 4*mt
        a(f'v_cvt_pk_bf16_f32 v{A}, v{A}, v{A+1}')
        a(f'v_cvt_pk_bf16_f32 v{A+1}, v{A+2}, v{A+3}')
        a(f'v_add_u32 v6, {20480*mt}, v5')
        a(f'buffer_store_dwordx2 v[{A}:{A+1}], v6, {rsrc(S_OUT)}, s64 offen')
    rt('end', 5)

def build(stamps=False):
    a = Asm(); a.name = 'k'
    C = Ctx()
    C.rt = RT(a, stamps, RT_LDS); C.rt.stride = 44
    prologue(a, C)
    C.rt('start', 8)
    gemm1(a, C)
    a('''
    s_cmp_ge_u32 s3, 4
    s_cbranch_scc1 L_G2ROLE
    s_setprio 2
    ''')
    n0 = C.rt.n
    attention(a, C)
    if stamps: C.rt.dump()
    a('s_branch L_END')
    a.label('L_G2ROLE')
    names_att = list(C.rt.names)
    C.rt.n = n0; C.rt.names = C.rt.names[:n0]
    gemm2(a, C)
    if stamps:
        C.rt.dump()
        print(','.join(names_att), ','.join(C.rt.names), file=sys.stderr)
    a.label('L_END')
    a('s_endpgm')
    a.finalize()
    out = [f'''; fused persistent kernel v4
; @launch grid=(256,1,1) block=(512,1,1) lds={LDS_TOTAL}
.amdgcn_target "amdgcn-amd-amdhsa--gfx950"
.text
''']
    out.append(kernel_wrap(KN + '_kernel', a.text(), 256))
    out.append('.section .rodata,"a"\n.p2align 6\n')
    out.append(kd(KN + '_kernel', 256, 102))
    return ''.join(out)

if __name__ == '__main__':
    open(sys.argv[1], 'w').write(build(len(sys.argv) > 2))
```

```python
import sys, math, os
from asm import *
from gen1 import VM, f32bits, KN, kd, kernel_wrap
from stamp import RT
EXP = os.environ.get('EXP', '')

S_X, S_WQKV, S_W1, S_W2, S_WO, S_GW, S_OUT, S_WS, S_DBG = 8, 12, 16, 20, 24, 28, 32, 36, 88
QKV_OFF = 0; H_OFF = 0x800000; O_OFF = 0xE40000; G_OFF = 0x1100000; WS_SIZE = 0x1600000
LD = 'sc1' if 'ldsc1' in EXP else ''
CQ = math.log2(math.e) / math.sqrt(20.0)
LDS_TOTAL = 163840
SLOT = 32768
KV_BASE = 98304
ARR = 3104
OST = 81920
CNT_LDS = 163456
RT_LDS = 163488
OOB = 0x7ff00000
B0_BASE = 131072
G2SEL = 7 if 'nog2' in EXP else 0
FLAG_OFF = 0x1200000
EPOCH_OFF = 0x11F0000
TOK_LDS = CNT_LDS + 24

def rsrc(d): return f's[{d}:{d+3}]'
class Ctx: pass
class LG:
    def __init__(self): self.ops = []
    def issue(self, tag): self.ops.append(tag)
    def wait_for(self, a, pred):
        last = -1
        for i, t in enumerate(self.ops):
            if pred(t): last = i
        assert last >= 0
        n = len(self.ops) - 1 - last
        a('s_waitcnt lgkmcnt(%d)' % min(n, 15))

def flag_store(a, val, v0=8):
    a(f'''
    v_mov_b32 v{v0+1}, {TOK_LDS}
    ds_read_b32 v{v0}, v{v0+1}
    s_lshl_b32 s64, s92, 7
    s_add_u32 s64, s64, {FLAG_OFF + (val-1)*256*128}
    v_mov_b32 v{v0+1}, s64
    s_waitcnt lgkmcnt(0)
    s_mov_b64 exec, 1
    buffer_store_dword v{v0}, v{v0+1}, {rsrc(S_WS)}, 0 offen sc1
    s_mov_b64 exec, -1
    ''')

def count_signal(a, cnt_off, last, val, tag, v0=8):
    a(f'''
    v_mov_b32 v{v0}, {CNT_LDS + cnt_off}
    v_mov_b32 v{v0+1}, 1
    s_mov_b64 exec, 1
    ds_add_rtn_u32 v{v0+2}, v{v0}, v{v0+1}
    s_waitcnt lgkmcnt(0)
    v_readfirstlane_b32 s64, v{v0+2}
    s_mov_b64 exec, -1
    s_cmp_lg_u32 s64, {last}
    s_cbranch_scc1 L_cs{tag}
    ''')
    flag_store(a, val, v0)
    a.label(f'L_cs{tag}')

def poll(a, first_sreg, ndw, minval, tag, va, vb):
    lab = f'L_poll{tag}'; done = f'L_polld{tag}'
    add = (0x80 - minval) * 0x01010101
    a(f'''
    v_lshlrev_b32 v{va}, 2, v1
    v_cmp_gt_u32 vcc, {ndw}, v1
    v_cndmask_b32 v{va}, 0, v{va}, vcc
    v_add_u32 v{va}, {first_sreg}, v{va}
    ''')
    a.label(lab)
    a(f'''
    buffer_load_dword v{vb}, v{va}, {rsrc(S_DBG)}, 0 offen sc1
    s_waitcnt vmcnt(0)
    v_add_u32 v{vb}, {add:#x}, v{vb}
    v_and_b32 v{vb}, 0x80808080, v{vb}
    v_cmp_ne_u32 vcc, 0x80808080, v{vb}
    s_cmp_eq_u64 vcc, 0
    s_cbranch_scc1 {done}
    s_sleep 1
    s_branch {lab}
    ''')
    a.label(done)

def poll_bcast(a, leader, first_idx_sreg, nflags, phase, tag, va, vb, lds_word, sleep=2):
    a(f'''
    s_cmp_lg_u32 s3, {leader}
    s_cbranch_scc1 L_pbw{tag}
    v_mov_b32 v{va}, {TOK_LDS}
    ds_read_b32 v{vb}, v{va}
    v_cmp_gt_u32 vcc, {nflags}, v1
    v_cndmask_b32 v{va}, 0, v1, vcc
    v_add_u32 v{va}, {first_idx_sreg}, v{va}
    v_lshlrev_b32 v{va}, 7, v{va}
    v_add_u32 v{va}, {FLAG_OFF + (phase-1)*256*128}, v{va}
    s_waitcnt lgkmcnt(0)
    v_readfirstlane_b32 s85, v{vb}
    ''')
    lab = f'L_poll{tag}'; done = f'L_polld{tag}'
    a.label(lab)
    a(f'''
    buffer_load_dword v{vb}, v{va}, {rsrc(S_WS)}, 0 offen sc1
    s_waitcnt vmcnt(0)
    v_cmp_ne_u32 vcc, s85, v{vb}
    s_cmp_eq_u64 vcc, 0
    s_cbranch_scc1 {done}
    s_sleep {sleep}
    s_branch {lab}
    ''')
    a.label(done)
    a(f'''
    v_mov_b32 v{va}, {lds_word}
    v_mov_b32 v{vb}, 1
    ds_write_b32 v{va}, v{vb}
    s_waitcnt lgkmcnt(0)
    s_branch L_pbd{tag}
    ''')
    a.label(f'L_pbw{tag}')
    a(f'v_mov_b32 v{va}, {lds_word}')
    a.label(f'L_pbs{tag}')
    a(f'''
    ds_read_b32 v{vb}, v{va}
    s_waitcnt lgkmcnt(0)
    v_readfirstlane_b32 s64, v{vb}
    s_cmp_lg_u32 s64, 0
    s_cbranch_scc1 L_pbd{tag}
    s_sleep 1
    s_branch L_pbs{tag}
    ''')
    a.label(f'L_pbd{tag}')

XF = 96; ACC = 64; WF = 32
def xf(s, t): return XF + (s * 2 + t) * 4
KVS = 40

def prologue(a, C):
    a(f'''
    s_cmp_ge_u32 s2, 256
    s_cbranch_scc1 L_END
    s_load_dwordx4 s[40:43], s[0:1], 0
    s_load_dwordx2 s[44:45], s[0:1], 16
    s_load_dwordx4 s[48:51], s[0:1], 32
    s_load_dwordx4 s[52:55], s[0:1], 48
    s_load_dwordx4 s[56:59], s[0:1], 64
    v_and_b32 v1, 63, v0
    v_lshrrev_b32 v2, 6, v0
    s_and_b32 s63, s2, 7
    s_lshr_b32 s64, s2, 3
    v_readfirstlane_b32 s3, v2
    s_lshr_b32 s93, s63, 2
    s_lshl_b32 s93, s93, 3
    s_and_b32 s65, s64, 7
    s_add_u32 s93, s93, s65
    s_lshr_b32 s62, s64, 3
    s_and_b32 s94, s63, 3
    s_lshl_b32 s94, s94, 2
    s_add_u32 s94, s94, s62
    s_lshl_b32 s92, s93, 4
    s_add_u32 s92, s92, s94
    ''')

def srd(a, d, lo, size):
    a(f'''
    s_mov_b32 s{d}, s{lo}
    s_and_b32 s{d+1}, s{lo+1}, 0xffff
    s_mov_b32 s{d+2}, {size}
    s_mov_b32 s{d+3}, 0x00020000
    ''')

def gemm1(a, C):
    rt = C.rt
    vm = VM(); lg = LG()
    def acc(t, nt): return ACC + (t * 4 + nt) * 4
    def wf(ksl, nt): return WF + (ksl * 4 + nt) * 4
    a('''
    v_lshrrev_b32 v6, 3, v1
    v_lshrrev_b32 v7, 4, v1
    v_and_b32 v8, 7, v1
    s_and_b32 s74, s3, 3
    s_lshl_b32 s64, s74, 5
    v_add_u32 v9, s64, v6
    v_mul_u32_u24 v4, 1280, v9
    v_xor_b32 v10, v8, v7
    v_lshl_add_u32 v4, v10, 4, v4
    v_xor_b32 v10, 4, v10
    v_add_u32 v9, 8, v9
    v_mul_u32_u24 v5, 1280, v9
    v_lshl_add_u32 v5, v10, 4, v5
    s_mul_i32 s66, s93, 163840
    s_add_u32 s75, s66, 20480
    s_lshr_b32 s64, s74, 1
    s_lshl_b32 s64, s64, 5
    v_add_u32 v9, s64, v6
    v_and_b32 v10, 2, v6
    v_xor_b32 v10, v8, v10
    s_and_b32 s65, s74, 1
    s_lshl_b32 s65, s65, 7
    v_lshl_add_u32 v13, v10, 4, s65
    v_xor_b32 v10, 4, v10
    v_lshl_add_u32 v14, v10, 4, s65
    v_mul_u32_u24 v2, 3840, v9
    v_add_u32 v2, v2, v13
    v_add_u32 v10, 8, v9
    v_mul_u32_u24 v3, 3840, v10
    v_add_u32 v3, v3, v14
    s_lshl_b32 s67, s94, 8
    s_lshl_b32 s68, s74, 12
    s_lshr_b32 s64, s74, 1
    s_lshl_b32 s69, s64, 13
    s_and_b32 s65, s74, 1
    s_lshl_b32 s65, s65, 12
    s_add_u32 s69, s69, s65
    s_add_u32 s69, s69, 16384
    s_cmp_eq_u32 s94, 15
    s_cselect_b32 s67, 0x7ff00000, s67
    s_cselect_b32 s70, 0, %d
    s_add_u32 s76, s67, %d
    s_waitcnt lgkmcnt(0)
    ''' % (64*3840, 16*3840))
    srd(a, S_X, 40, 2048 * 1280)
    srd(a, S_WQKV, 42, 640 * 3840)
    srd(a, S_WS, 58, WS_SIZE)
    srd(a, S_DBG, 56, 256)
    a(f'''
    s_xor_b32 s64, s3, 4
    s_or_b32 s64, s64, s2
    s_cmp_lg_u32 s64, 0
    s_cbranch_scc1 L_notok
    v_mov_b32 v8, {EPOCH_OFF}
    buffer_load_dword v9, v8, {rsrc(S_WS)}, 0 offen sc1
    s_waitcnt vmcnt(0)
    v_add_u32 v9, 1, v9
    v_mov_b32 v10, v9
    v_mov_b32 v11, 0x5a5a5a5a
    v_mov_b32 v14, 0
    s_mov_b64 exec, 1
    buffer_store_dword v9, v8, {rsrc(S_WS)}, 0 offen sc1
    buffer_store_dwordx2 v[10:11], v14, {rsrc(S_DBG)}, 0 offen sc1
    s_mov_b64 exec, -1
    ''')
    a.label('L_notok')
    def dma_A(sg):
        slot = (sg % 4) * SLOT
        out = []
        for i in range(4):
            def f(i=i):
                a(f's_add_u32 m0, s68, {slot + 1024*i}')
                a(f'buffer_load_dwordx4 v{4+(i&1)}, {rsrc(S_X)}, s{66 if i < 2 else 75} offen lds'); vm.issue(('A', sg))
                if i == 3: a('s_add_u32 s66, s66, 128\ns_add_u32 s75, s75, 128')
            out.append(f)
        for i in range(4):
            def f(i=i):
                a(f's_add_u32 m0, s69, {slot + 1024*i}')
                a(f'buffer_load_dwordx4 v{2+(i&1)}, {rsrc(S_WQKV)}, s{67 if i < 2 else 76} offen lds'); vm.issue(('A', sg))
                if i == 3: a('s_add_u32 s67, s67, s70\ns_add_u32 s76, s76, s70')
            out.append(f)
        return out
    def lo4(fn, tag):
        a(f's_cmp_ge_u32 s3, 4\ns_cbranch_scc1 L_lo{tag}')
        fn()
        a.label(f'L_lo{tag}')
    lo4(lambda: [f() for sg in range(3) for f in dma_A(sg)], 'p')
    pass
    srd(a, S_W1, 48, 640 * 3072)
    srd(a, S_GW, 52, 1280)
    srd(a, S_WO, 44, 640 * 1280)
    srd(a, S_W2, 50, 1536 * 1280)
    srd(a, S_OUT, 54, 2048 * 1280)
    if 'tlb' in EXP:
        a(f'''
        s_cmp_lt_u32 s3, 4
        s_cbranch_scc1 L_tlbdone
        v_lshlrev_b32 v8, 16, v1
        v_add_u32 v8, 0x8000, v8
        s_cmp_eq_u32 s3, 4
        s_cbranch_scc0 L_tlb5
        buffer_load_dword v254, v8, {rsrc(S_WQKV)}, 0 offen
        buffer_load_dword v254, v8, {rsrc(S_W1)}, 0 offen
        buffer_load_dword v254, v8, {rsrc(S_X)}, 0 offen
        s_branch L_tlbdone
        ''')
        a.label('L_tlb5')
        a(f'''
        s_cmp_eq_u32 s3, 5
        s_cbranch_scc0 L_tlb6
        buffer_load_dword v254, v8, {rsrc(S_W2)}, 0 offen
        buffer_load_dword v254, v8, {rsrc(S_WO)}, 0 offen
        buffer_load_dword v254, v8, {rsrc(S_OUT)}, 0 offen
        s_branch L_tlbdone
        ''')
        a.label('L_tlb6')
        a(f'''
        s_sub_u32 s64, s3, 6
        s_mul_i32 s64, s64, {3*64*65536}
        buffer_load_dword v254, v8, {rsrc(S_WS)}, s64 offen {LD}
        s_add_u32 s64, s64, {64*65536}
        buffer_load_dword v254, v8, {rsrc(S_WS)}, s64 offen {LD}
        s_add_u32 s64, s64, {64*65536}
        buffer_load_dword v254, v8, {rsrc(S_WS)}, s64 offen {LD}
        ''')
        a.label('L_tlbdone')
    a(f'''
    s_cmp_ge_u32 s3, 6
    s_cbranch_scc1 L_noones
    s_lshl_b32 s64, s3, 9
    v_lshl_add_u32 v8, v1, 3, s64
    v_add_u32 v8, {KV_BASE + 20*ARR}, v8
    v_mov_b32 v10, 0x3f80
    v_mov_b32 v11, 0
    ds_write_b64 v8, v[10:11]
    v_mov_b32 v8, {CNT_LDS}
    v_mov_b32 v10, 0
    ds_write_b64 v8, v[10:11]
    ds_write_b64 v8, v[10:11] offset:8
    ds_write_b64 v8, v[10:11] offset:16
    ''')
    a.label('L_noones')
    for b in range(3):
        a(f'''
        v_add_u32 v8, {64*b}, v1
        v_mul_u32_u24 v9, 171, v8
        v_lshrrev_b32 v9, 10, v9
        v_mul_u32_u24 v10, 6, v9
        v_sub_u32 v10, v8, v10
        v_bfe_u32 v14, v9, 2, 2
        v_lshlrev_b32 v14, 3, v14
        v_lshrrev_b32 v15, 4, v9
        v_lshl_add_u32 v14, v15, 2, v14
        v_and_b32 v15, 3, v9
        v_add_u32 v14, v14, v15
        v_mul_u32_u24 v{11+b}, 3072, v14
        v_lshl_add_u32 v{11+b}, v10, 4, v{11+b}
        ''')
    a('''
    s_lshr_b32 s64, s3, 1
    s_mul_i32 s71, s64, 98304
    s_mul_i32 s65, s94, 192
    s_add_u32 s71, s71, s65
    s_and_b32 s65, s3, 1
    s_mul_i32 s65, s65, 96
    s_add_u32 s71, s71, s65
    s_mul_i32 s72, s3, 3072
    ''')
    def dma_B(j):
        slot = B0_BASE if j == 0 else ((9 + j) % 4) * SLOT
        out = []
        for b in range(3):
            def f(b=b):
                a(f's_add_u32 m0, s72, {slot + 1024*b}')
                a(f'buffer_load_dwordx4 v{11+b}, {rsrc(S_W1)}, s71 offen lds'); vm.issue(('B', j))
                if b == 2: a(f's_add_u32 s71, s71, {128*3072}')
            out.append(f)
        return out
    a('''
    v_and_b32 v6, 15, v1
    v_lshrrev_b32 v8, 1, v6
    v_xor_b32 v9, v7, v8
    s_and_b32 s64, s3, 3
    s_lshl_b32 s64, s64, 12
    v_lshlrev_b32 v10, 7, v6
    v_add_u32 v10, s64, v10
    v_lshl_add_u32 v16, v9, 4, v10
    v_xor_b32 v9, 4, v9
    v_lshl_add_u32 v17, v9, 4, v10
    v_add_u32 v18, 0x10000, v16
    v_add_u32 v19, 0x10000, v17
    v_bfe_u32 v8, v1, 2, 2
    v_and_b32 v9, 3, v1
    v_lshrrev_b32 v10, 1, v8
    v_and_b32 v14, 1, v7
    v_lshl_or_b32 v10, v14, 1, v10
    v_lshl_add_u32 v14, v7, 3, v8
    v_lshlrev_b32 v14, 7, v14
    v_lshl_add_u32 v14, v9, 3, v14
    s_lshr_b32 s64, s3, 2
    s_lshl_b32 s65, s64, 12
    s_add_u32 s65, s65, 16384
    v_add_u32 v14, s65, v14
    ''')
    for nt in range(4):
        a(f'''
        v_xor_b32 v15, {nt}, v10
        v_lshl_add_u32 v{20+nt}, v15, 5, v14
        v_add_u32 v{24+nt}, 0x10000, v{20+nt}
        ''')
    a('''
    v_lshl_add_u32 v14, v7, 2, v8
    v_mul_u32_u24 v28, 96, v14
    v_lshl_add_u32 v28, v9, 3, v28
    s_mul_i32 s65, s64, 3072
    v_add_u32 v28, s65, v28
    v_add_u32 v29, 0x10000, v28
    v_add_u32 v31, 0x20000, v28
    v_lshlrev_b32 v30, 4, v1
    ''')
    for i in range(32): a(f'v_mov_b32 v{ACC+i}, 0')
    def xaddr(sg, ksl):
        sl = sg % 4
        return (16 + ksl + (2 if sl >= 2 else 0), (sl % 2) * SLOT)
    def waddr(sg, nt):
        sl = sg % 4
        return (20 + nt + (4 if sl >= 2 else 0), (sl % 2) * SLOT)
    def xread_list(sg):
        out = []
        for ksl in range(2):
            va, off = xaddr(sg, ksl)
            for t in range(2):
                r0 = xf(2*sg + ksl, t)
                out.append((f'ds_read_b128 v[{r0}:{r0+3}], v{va} offset:{off + 2048*t}', ('x', sg, ksl)))
        return out
    def wread(sg, ksl, nt):
        va, off = waddr(sg, nt)
        W = wf(ksl, nt)
        for u in range(2):
            a(f'ds_read_b64_tr_b16 v[{W+2*u}:{W+2*u+1}], v{va} offset:{off + ksl*8192 + 512*u}'); lg.issue(('w', sg, ksl, nt))
    nB = [0]
    def tok_early(tag):
        a(f'''
        s_cmp_lg_u32 s3, 0
        s_cbranch_scc1 L_te{tag}
        v_mov_b32 v14, 0
        buffer_load_dwordx2 v[14:15], v14, {rsrc(S_DBG)}, 0 offen sc1
        ''')
        a.label(f'L_te{tag}')
    def next_dmas(sg):
        if sg + 3 < 10: return dma_A(sg + 3)
        r = dma_B(nB[0]); nB[0] += 1
        return r
    TOUCH = 'notouch' not in EXP
    if TOUCH:
        a('''
        s_lshr_b32 s64, s2, 3
        s_bfe_u32 s65, s2, 0x10002
        s_lshl_b32 s65, s65, 10
        s_lshl_b32 s73, s64, 5
        s_add_u32 s65, s65, s73
        v_and_b32 v8, 31, v1
        v_add_u32 v9, s65, v8
        v_mul_u32_u24 v9, 1280, v9
        v_lshrrev_b32 v10, 5, v1
        v_lshl_add_u32 v9, v10, 7, v9
        v_lshlrev_b32 v10, 6, v7
        v_bfe_u32 v14, v1, 3, 1
        v_add_u32 v10, v10, v14
        s_lshl_b32 s73, s64, 1
        v_add_u32 v10, s73, v10
        v_mul_u32_u24 v10, 3840, v10
        v_and_b32 v14, 7, v1
        v_lshl_add_u32 v10, v14, 7, v10
        s_and_b32 s65, s2, 3
        s_lshl_b32 s73, s65, 10
        v_add_u32 v10, s73, v10
        s_and_b32 s73, s3, 1
        s_lshl_b32 s73, s73, 6
        v_add_u32 v8, s73, v1
        v_mul_u32_u24 v14, 0x2aab, v8
        v_lshrrev_b32 v14, 16, v14
        v_mul_u32_u24 v15, 6, v14
        v_sub_u32 v15, v8, v15
        s_mul_i32 s64, s64, 20
        v_add_u32 v14, s64, v14
        v_mul_u32_u24 v14, 3072, v14
        v_lshl_add_u32 v14, v15, 7, v14
        s_mul_i32 s65, s65, 768
        v_add_u32 v14, s65, v14
        v_cmp_gt_u32 vcc, 120, v8
        v_mov_b32 v15, 0x7fffff00
        v_cndmask_b32 v8, v15, v14, vcc
        ''')
    def only_wave(wv, txt, tag):
        a(f's_cmp_lg_u32 s3, {wv}')
        a(f's_cbranch_scc1 L_t{tag}')
        a(txt)
        a.label(f'L_t{tag}')
    def touches(sg, pfx):
        if not TOUCH: return
        TD = 255
        if sg == 0:
            only_wave(0, f'buffer_load_dword v{TD}, v9, {rsrc(S_X)}, 0 offen offset:{128*5}', pfx + 'x0')
            only_wave(2, f's_mov_b32 s73, {64*3840*5}\nbuffer_load_dword v{TD}, v10, {rsrc(S_WQKV)}, s73 offen', pfx + 'w0')
            only_wave(3, f's_mov_b32 s73, {64*3840*7}\nbuffer_load_dword v{TD}, v10, {rsrc(S_WQKV)}, s73 offen', pfx + 'w1')
        if sg == 1:
            only_wave(1, f'buffer_load_dword v{TD}, v9, {rsrc(S_X)}, 0 offen offset:{128*9}', pfx + 'x1')
            only_wave(4, f's_mov_b32 s73, {64*3840*9}\nbuffer_load_dword v{TD}, v10, {rsrc(S_WQKV)}, s73 offen', pfx + 'w2')
        if sg == 2:
            for wv in (5, 6, 7, 0):
                only_wave(wv, f'buffer_load_dword v{TD}, v8, {rsrc(S_W1)}, 0 offen', pfx + f'b{wv}')
    a('''
    s_cmp_eq_u32 s94, 15
    s_cbranch_scc1 L_GWG
    ''')
    vm_save = list(vm.ops)
    def all_touches(pfx, part):
        if not TOUCH: return
        TD = 255
        if part == 0:
            if 'tw' in EXP: only_wave(6, f's_mov_b32 s73, {64*3840*4}\nbuffer_load_dword v{TD}, v10, {rsrc(S_WQKV)}, s73 offen', pfx + 'w0')
            if 'tx' in EXP: only_wave(7, f'buffer_load_dword v{TD}, v9, {rsrc(S_X)}, 0 offen offset:{128*4}', pfx + 'x0')
        if part == 1:
            if 'tx' in EXP: only_wave(7, f'buffer_load_dword v{TD}, v9, {rsrc(S_X)}, 0 offen offset:{128*6}', pfx + 'x1')
        if part == 2:
            if 'tw' in EXP: only_wave(6, f's_mov_b32 s73, {64*3840*8}\nbuffer_load_dword v{TD}, v10, {rsrc(S_WQKV)}, s73 offen', pfx + 'w1')
            if 'tx' in EXP: only_wave(7, f'buffer_load_dword v{TD}, v9, {rsrc(S_X)}, 0 offen offset:{128*8}', pfx + 'x2')
        if part == 3:
            only_wave(4, f'buffer_load_dword v{TD}, v8, {rsrc(S_W1)}, 0 offen', pfx + 'b0')
            only_wave(5, f'buffer_load_dword v{TD}, v8, {rsrc(S_W1)}, 0 offen', pfx + 'b1')
    def phaseA(role):
        nB[0] = 0
        lg.ops = []
        if role == 'lo':
            vm.ops = list(vm_save)
            vm.wait_for(a, lambda t: t == ('A', 0))
        else:
            vm.ops = []
        a('s_barrier')
        for txt, tag in xread_list(0): a(txt); lg.issue(tag)
        for ksl in range(2):
            for nt in range(4): wread(0, ksl, nt)
        for sg in range(10):
            if role == 'lo' and sg + 1 < 10: vm.wait_for(a, lambda t: t == ('A', sg + 1))
            if sg == 9: a('s_waitcnt lgkmcnt(0)')
            a('s_barrier')
            if sg == 7 and role == 'lo': tok_early('n')
            if role == 'hi' and sg < 4: all_touches('h', sg)
            if sg + 3 < 10: dm = dma_A(sg + 3) if role == 'lo' else []
            else:
                dm = dma_B(sg - 6)
            if sg == 1: dm = dm + dma_B(0)
            more = sg + 1 < 10
            xr = xread_list(sg + 1) if more else []
            pi = 0
            for ksl in range(2):
                for nt in range(4):
                    if pi < len(xr): a(xr[pi][0]); lg.issue(xr[pi][1])
                    lg.wait_for(a, lambda t: t in (('w', sg, ksl, nt), ('x', sg, ksl)))
                    if dm and (len(dm) > 4 or pi % 2 == 0): dm.pop(0)()
                    if len(dm) > 8 - pi: dm.pop(0)()
                    for t in range(2):
                        x = xf(2*sg + ksl, t)
                        a(f'v_mfma_f32_16x16x32_bf16 v[{acc(t,nt)}:{acc(t,nt)+3}], v[{wf(ksl,nt)}:{wf(ksl,nt)+3}], v[{x}:{x+3}], v[{acc(t,nt)}:{acc(t,nt)+3}]')
                    if more: wread(sg + 1, ksl, nt)
                    pi += 1
            while dm: dm.pop(0)()
            if ('astage' in EXP and sg in (0, 1, 2, 4, 6, 8)) or ('epi' in EXP and sg in (6, 8)):
                rt(f'A{sg}', 14 if sg < 5 else 8)
    a('s_cmp_ge_u32 s3, 4\ns_cbranch_scc1 L_AHI')
    n_rt0 = rt.n; names0 = list(rt.names)
    phaseA('lo')
    vm_lo = list(vm.ops)
    a('s_branch L_AEPI')
    a.label('L_AHI')
    rt.n = n_rt0; rt.names = list(names0)
    phaseA('hi')
    a.label('L_AEPI')
    if 'epi' in EXP: rt('A9', 8)
    vm.ops = [('B', 0)] * 3 + [('B', 1)] * 3 + [('B', 2)] * 3 + [('B', 3)] * 3
    a(f'''
    v_lshlrev_b32 v8, 14, v7
    v_and_b32 v9, 14, v6
    v_lshl_add_u32 v8, v9, 3, v8
    v_and_b32 v9, 1, v6
    v_lshl_add_u32 v8, v9, 7, v8
    v_cmp_eq_u32 s[74:75], 0, v9
    s_lshl_b32 s64, s94, 5
    s_lshr_b32 s65, s3, 2
    s_lshl_b32 s65, s65, 4
    s_add_u32 s64, s64, s65
    s_lshl_b32 s64, s64, 14
    s_lshl_b32 s65, s93, 7
    s_and_b32 s73, s3, 3
    s_lshl_b32 s73, s73, 5
    s_add_u32 s65, s65, s73
    s_lshl_b32 s65, s65, 3
    s_add_u32 s64, s64, s65
    s_add_u32 s64, s64, {QKV_OFF}
    s_cmp_lt_u32 s94, 5
    s_cselect_b32 s65, {f32bits(CQ):#x}, 1.0
    ''')
    EV = 's[74:75]'
    for nt in range(4):
        A0 = acc(0, nt); A1 = acc(1, nt); T = WF + 8*nt
        for A in (A0, A1):
            for r in range(4): a(f'v_mul_f32 v{A+r}, s65, v{A+r}')
            a(f'v_cvt_pk_bf16_f32 v{A}, v{A}, v{A+1}')
            a(f'v_cvt_pk_bf16_f32 v{A+1}, v{A+2}, v{A+3}')
        a(f'v_cndmask_b32 v{T}, v{A0}, v{A1}, {EV}')
        a(f'v_cndmask_b32 v{T+1}, v{A0+1}, v{A1+1}, {EV}')
        a(f'v_mov_b32_dpp v{T+2}, v{T} quad_perm:[1,0,3,2] row_mask:0xf bank_mask:0xf')
        a(f'v_mov_b32_dpp v{T+3}, v{T+1} quad_perm:[1,0,3,2] row_mask:0xf bank_mask:0xf')
        a(f'v_cndmask_b32 v{T+4}, v{T+2}, v{A0}, {EV}')
        a(f'v_cndmask_b32 v{T+5}, v{T+3}, v{A0+1}, {EV}')
        a(f'v_cndmask_b32 v{T+6}, v{A1}, v{T+2}, {EV}')
        a(f'v_cndmask_b32 v{T+7}, v{A1+1}, v{T+3}, {EV}')
        a(f'buffer_store_dwordx4 v[{T+4}:{T+7}], v8, {rsrc(S_WS)}, s64 offen sc1'); vm.issue(('ST',))
        a('s_add_u32 s64, s64, 65536')
    if 'epi' in EXP: rt('stored', 8)
    vm.wait_for(a, lambda t: t == ('B', 0))
    if 'epi' in EXP: rt('b0w', 8)
    vmA_tail = list(vm.ops)
    a('s_branch L_AJOIN')
    a.label('L_GWG')
    vm.ops = list(vm_save); nB[0] = 0
    a('v_lshlrev_b32 v20, 4, v7')
    GSAFE = True
    GACC = ACC
    def gw_wait(s):
        idx = max(i for i, t in enumerate(vm.ops) if t == ('GW', s))
        n = sum(1 for t in vm.ops[idx+1:] if t[0] != 'A')
        a(f's_waitcnt vmcnt({n})')
    for s in range(8):
        a(f'buffer_load_dwordx4 v[{WF+4*s}:{WF+4*s+3}], v20, {rsrc(S_GW)}, 0 offen offset:{64*s}'); vm.issue(('GW', s))
    for sg in range(10):
        vm.wait_for(a, lambda t: t == ('A', sg))
        a('s_barrier')
        if sg == 7: tok_early('g')
        if sg + 3 < 10: lo4(lambda: [f() for f in dma_A(sg + 3)], f'g{sg}')
        else:
            for f in dma_B(sg - 6): f()
        if sg == 1:
            for f in dma_B(0): f()
        for txt, tag in xread_list(sg): a(txt)
        for ksl in range(2):
            s = 2*sg + ksl
            gw_wait(s)
            a(f's_waitcnt lgkmcnt({2 if ksl == 0 else 0})')
            for t in range(2):
                x = xf(s, t)
                a(f'v_mfma_f32_16x16x32_bf16 v[{GACC+4*t}:{GACC+4*t+3}], v[{WF+4*(s%8)}:{WF+4*(s%8)+3}], v[{x}:{x+3}], v[{GACC+4*t}:{GACC+4*t+3}]')
            if s + 8 < 20:
                a(f'buffer_load_dwordx4 v[{WF+4*(s%8)}:{WF+4*(s%8)+3}], v20, {rsrc(S_GW)}, 0 offen offset:{64*(s+8)}'); vm.issue(('GW', s + 8))
    a('s_nop 0')
    for t in range(2):
        z = GACC + 4*t
        a(f'''
        v_mul_f32 v{z}, {f32bits(-math.log2(math.e)):#x}, v{z}
        v_exp_f32 v{z}, v{z}
        v_add_f32 v{z}, 1.0, v{z}
        v_rcp_f32 v{z}, v{z}
        ''')
    a(f'''
    v_lshlrev_b32 v8, 2, v6
    v_cmp_gt_u32 vcc, 16, v1
    v_mov_b32 v9, 0x7fffff00
    v_cndmask_b32 v8, v9, v8, vcc
    s_lshl_b32 s64, s93, 7
    s_and_b32 s65, s3, 3
    s_lshl_b32 s65, s65, 5
    s_add_u32 s64, s64, s65
    s_lshl_b32 s64, s64, 2
    s_add_u32 s64, s64, {G_OFF}
    buffer_store_dword v{GACC}, v8, {rsrc(S_WS)}, s64 offen sc1
    buffer_store_dword v{GACC+4}, v8, {rsrc(S_WS)}, s64 offen offset:64 sc1
    s_waitcnt vmcnt(2)
    ''')
    a.label('L_AJOIN')
    a(f'''
    s_cmp_lg_u32 s3, 0
    s_cbranch_scc1 L_tokdone
    v_readfirstlane_b32 s64, v15
    s_cmp_lg_u32 s64, 0
    s_cbranch_scc1 L_tokok
    ''')
    a.label('L_tokpoll')
    a(f'''
    v_mov_b32 v14, 0
    buffer_load_dwordx2 v[14:15], v14, {rsrc(S_DBG)}, 0 offen sc1
    s_waitcnt vmcnt(0)
    v_readfirstlane_b32 s64, v15
    s_cmp_lg_u32 s64, 0
    s_cbranch_scc0 L_tokpoll
    ''')
    a.label('L_tokok')
    a(f'''
    v_mov_b32 v8, {TOK_LDS}
    ds_write_b32 v8, v14
    ''')
    a.label('L_tokdone')
    if 'epi' in EXP: rt('tok', 8)
    a('s_waitcnt lgkmcnt(0)')
    a('s_barrier')
    rt('Ajoin', 8)
    vm.ops = list(vmA_tail)
    def accB(t, nt): return ACC + (t * 3 + nt) * 4
    def wfB(k, nt): return WF + ((k % 2) * 3 + nt) * 4
    def wreadB(k, nt):
        j = k // 4; ksl = k % 4
        if j == 0:
            va = 31; off = ksl * 6144 + nt * 32
        else:
            sl = (9 + j) % 4
            va = 28 + (1 if sl >= 2 else 0)
            off = (sl % 2) * SLOT + ksl * 6144 + nt * 32
        W = wfB(k, nt)
        for u in range(2):
            a(f'ds_read_b64_tr_b16 v[{W+2*u}:{W+2*u+1}], v{va} offset:{off + 1536*u}'); lg.issue(('wb', k, nt))
    lg.ops = []
    for k in range(2):
        for nt in range(3): wreadB(k, nt)
    for i in range(24): a(f'v_mov_b32 v{ACC+i}, 0')
    pend = dma_B(4)
    for k in range(20):
        if k == 2:
            vm.wait_for(a, lambda t: t == ('B', 1))
            a('s_barrier')
        if k == 6:
            vm.wait_for(a, lambda t: t == ('ST',))
            a('s_barrier')
            a('s_cmp_lg_u32 s3, 0\ns_cbranch_scc1 L_sigA')
            flag_store(a, 1)
            a.label('L_sigA')
        if k == 14:
            vm.wait_for(a, lambda t: t == ('B', 4))
            a('s_barrier')
        for nt in range(3):
            lg.wait_for(a, lambda t: t == ('wb', k, nt))
            if pend and nt != 1: pend.pop(0)()
            for t in range(2):
                x = xf(k, t)
                a(f'v_mfma_f32_16x16x32_bf16 v[{accB(t,nt)}:{accB(t,nt)+3}], v[{wfB(k,nt)}:{wfB(k,nt)+3}], v[{x}:{x+3}], v[{accB(t,nt)}:{accB(t,nt)+3}]')
            if k + 2 < 20: wreadB(k + 2, nt)
    assert not pend
    if 'cyc' not in EXP and 'astage' not in EXP and 'epi' not in EXP: rt('Bdone', 8)
    a(f'''
    s_lshl_b32 s64, s93, 2
    s_and_b32 s65, s3, 3
    s_add_u32 s64, s64, s65
    s_mul_i32 s64, s64, 96
    s_mul_i32 s65, s94, 6
    s_add_u32 s64, s64, s65
    s_lshr_b32 s65, s3, 2
    s_mul_i32 s65, s65, 3
    s_add_u32 s64, s64, s65
    s_lshl_b32 s64, s64, 10
    s_add_u32 s64, s64, {H_OFF}
    ''')
    for nt in range(3):
        D0 = WF + 4*nt
        for t in range(2):
            A = accB(t, nt)
            for r in range(4): a(f'v_max_f32 v{A+r}, 0, v{A+r}')
            a(f'v_cvt_pk_bf16_f32 v{D0+2*t}, v{A}, v{A+1}')
            a(f'v_cvt_pk_bf16_f32 v{D0+2*t+1}, v{A+2}, v{A+3}')
        a(f'buffer_store_dwordx4 v[{D0}:{D0+3}], v30, {rsrc(S_WS)}, s64 offen offset:{1024*nt} sc1'); vm.issue(('STH',))
    a('s_barrier')
    if 'astage' not in EXP and 'epi' not in EXP: rt('Bbar', 8)

def attention(a, C):
    rt = C.rt
    vm = VM()
    KF = 32; QR = [104, 232]
    a('''
    s_sub_i32 s64, s93, 2
    s_max_i32 s64, s64, 0
    s_lshl_b32 s64, s64, 4
    v_lshlrev_b32 v30, 4, v1
    ''')
    a(f'''
    s_lshr_b32 s65, s3, 1
    s_mul_i32 s65, s65, 160
    s_add_u32 s65, s65, 160
    s_mul_i32 s70, s94, 10
    s_add_u32 s65, s65, s70
    s_and_b32 s70, s3, 1
    s_mul_i32 s70, s70, 5
    s_add_u32 s65, s65, s70
    s_lshl_b32 s65, s65, 14
    s_mul_i32 s66, s3, {5*ARR}
    s_add_u32 s66, s66, {KV_BASE}
    ''')
    for b in range(3):
        a(f'''
        s_add_u32 s70, s93, {b}
        s_sub_i32 s70, s70, 2
        s_lshl_b32 s71, s70, 10
        s_add_u32 s71, s71, s65
        s_cmp_lt_i32 s70, 0
        s_cselect_b32 s{67+b}, {OOB:#x}, s71
        s_cselect_b32 s{60+b}, 0, 16384
        ''')
    a('s_mov_b32 s59, s64')
    a('s_waitcnt vmcnt(0)')
    count_signal(a, 4, 7, 2, 'B1')
    poll_bcast(a, 0, 's59', 48, 1, 'KV', 8, 9, CNT_LDS + 12)
    if 'astage' not in EXP and 'epi' not in EXP: rt('qkvflag', 8)
    for c in range(5):
        for b in range(3):
            a(f's_add_u32 m0, s66, {c*ARR + b*1024}')
            a(f'buffer_load_dwordx4 v30, {rsrc(S_WS)}, s{67+b} offen {LD} lds'); vm.issue(('KV',))
            a(f's_add_u32 s{67+b}, s{67+b}, s{60+b}')

    SB = [112, 128, 144]; NEGM = 160; PB = [176, 184]; VFB = [192, 200]; O = 208; M8 = 224
    a(f'''
    s_lshl_b32 s74, s93, 7
    s_lshl_b32 s70, s3, 5
    s_add_u32 s74, s74, s70
    v_and_b32 v5, 31, v1
    v_lshrrev_b32 v6, 5, v1
    v_add_u32 v7, s74, v5
    v_lshlrev_b32 v8, 3, v7
    v_lshl_add_u32 v9, v6, 15, v8
    v_add_u32 v10, 65536, v8
    v_cmp_eq_u32 vcc, 0, v6
    v_mov_b32 v11, 0x7fffff00
    v_cndmask_b32 v10, v11, v10, vcc
    s_mul_i32 s70, s94, {10*16384}
    s_add_u32 s70, s70, {QKV_OFF}
    ''')
    for hh in range(2):
        Q0 = QR[hh]
        a(f'''
        s_add_u32 s71, s70, 16384
        buffer_load_dwordx2 v[{Q0}:{Q0+1}], v9, {rsrc(S_WS)}, s70 offen {LD}
        buffer_load_dwordx2 v[{Q0+2}:{Q0+3}], v9, {rsrc(S_WS)}, s71 offen {LD}
        buffer_load_dwordx2 v[{Q0+4}:{Q0+5}], v10, {rsrc(S_WS)}, s70 offen {LD}
        s_add_u32 s70, s70, {5*16384}
        ''')
        for _ in range(3): vm.issue(('Q', hh))
    a(f'''
    v_lshlrev_b32 v12, 2, v7
    s_mov_b32 s70, {G_OFF}
    buffer_load_dword v13, v12, {rsrc(S_WS)}, s70 offen {LD}
    v_mov_b32 v11, 0x3f80
    '''); vm.issue(('G',))
    for hh in range(2):
        a(f'v_cndmask_b32 v{QR[hh]+6}, 0, v11, vcc')
        a(f'v_mov_b32 v{QR[hh]+7}, 0')
    a(f'''
    s_lshl_b32 s70, s3, 8
    s_add_u32 s70, s70, {KV_BASE}
    v_lshlrev_b32 v19, 3, v5
    v_add_u32 v19, s70, v19
    v_add_u32 v20, {4*ARR}, v19
    v_mul_u32_u24 v21, {2*ARR}, v6
    v_add_u32 v19, v19, v21
    ''')
    def kreads(hh):
        ko = hh * 5 * ARR
        for kb in (0, 8, 1, 2, 3, 4, 5, 6, 7):
            a(f'ds_read_b64 v[{KF+8*kb}:{KF+8*kb+1}], v19 offset:{ko + kb*256}')
            a(f'ds_read_b64 v[{KF+8*kb+2}:{KF+8*kb+3}], v19 offset:{ko + kb*256 + ARR}')
            a(f'ds_read_b64 v[{KF+8*kb+4}:{KF+8*kb+5}], v20 offset:{ko + kb*256}')
    MS_PLACEHOLDER = None
    MS = [40 + 2*i for i in range(10)] + [76 + 2*i for i in range(6)]
    a('''
    v_lshlrev_b32 v14, 2, v6
    v_sub_u32 v14, v5, v14
    ''')
    for r in range(16):
        c = 8*(r >> 2) + (r & 3)
        a(f'v_cmp_le_i32 s[{MS[r]}:{MS[r]+1}], {c}, v14')
    a('v_mov_b32 v15, 0xffff')
    a('v_mov_b32 v16, 0xffff0000')
    for i in range(8):
        a(f'''
        v_cndmask_b32 v17, 0, v15, s[{MS[2*i]}:{MS[2*i]+1}]
        v_cndmask_b32 v18, 0, v16, s[{MS[2*i+1]}:{MS[2*i+1]+1}]
        v_or_b32 v{M8+i}, v17, v18
        ''')
    a('''
    s_lshr_b32 s75, s74, 5
    s_sub_i32 s75, 8, s75
    s_max_i32 s75, s75, 0
    ''')
    for kb in range(9):
        a(f'''
        s_cmp_gt_u32 s75, {kb}
        s_cselect_b32 s70, 0xf149, 0
        v_mov_b32 v{KF+8*kb+6}, s70
        v_mov_b32 v{KF+8*kb+7}, 0
        ''')
    a(f'''
    s_lshl_b32 s70, s3, 8
    s_add_u32 s70, s70, {KV_BASE}
    v_bfe_u32 v21, v1, 4, 1
    v_bfe_u32 v22, v1, 2, 2
    v_and_b32 v23, 3, v1
    v_lshl_add_u32 v23, v21, 2, v23
    v_lshl_add_u32 v22, v6, 2, v22
    v_lshlrev_b32 v22, 3, v22
    v_add_u32 v22, s70, v22
    v_cmp_gt_u32 vcc, 5, v23
    v_add_u32 v24, 10, v23
    v_mov_b32 v25, 20
    v_cndmask_b32 v24, v25, v24, vcc
    v_add_u32 v26, 15, v23
    v_cndmask_b32 v26, v25, v26, vcc
    v_mul_u32_u24 v24, {ARR}, v24
    v_mul_u32_u24 v26, {ARR}, v26
    v_add_u32 v23, v22, v26
    v_add_u32 v22, v22, v24
    s_mul_i32 s70, s3, 2560
    s_add_u32 s70, s70, {OST}
    v_mul_u32_u24 v24, 80, v5
    v_add_u32 v24, s70, v24
    v_lshl_add_u32 v24, v6, 3, v24
    ''')
    MX = 28
    vm.wait_for(a, lambda t: t == ('KV',))
    a(f'''
    v_mov_b32 v8, {CNT_LDS + 8}
    v_mov_b32 v9, 1
    s_mov_b64 exec, 1
    ds_add_u32 v8, v9
    s_mov_b64 exec, -1
    ''')
    a.label('L_kvsync')
    a(f'''
    ds_read_b32 v9, v8
    s_waitcnt lgkmcnt(0)
    v_readfirstlane_b32 s70, v9
    s_cmp_lt_u32 s70, 4
    s_cbranch_scc1 L_kvsync
    ''')
    kreads(0)
    for hh in (range(2) if 'noatt' not in EXP else []):
        Q0 = QR[hh]; Q1 = Q0 + 4
        vm.wait_for(a, lambda t: t == ('Q', hh))
        a('s_waitcnt lgkmcnt(0)')
        def s1(dst, kb, c): return f'v_mfma_f32_32x32x16_bf16 v[{dst}:{dst+15}], v[{KF+8*kb}:{KF+8*kb+3}], v[{Q0}:{Q0+3}], {c}'
        def s2(dst, kb): return f'v_mfma_f32_32x32x16_bf16 v[{dst}:{dst+15}], v[{KF+8*kb+4}:{KF+8*kb+7}], v[{Q1}:{Q1+3}], v[{dst}:{dst+15}]'
        def smfma(dst, kb, c): a(s1(dst, kb, c)); a(s2(dst, kb))
        def maxes(S, first):
            for i in range(8):
                if first and i == 0: a(f'v_max_f32 v{MX}, v{S}, v{S+1}')
                else: a(f'v_max3_f32 v{MX}, v{MX}, v{S+2*i}, v{S+2*i+1}')
        bufof = {1: SB[2], 2: SB[1]}
        rot = [SB[0], SB[2], SB[1]]
        for kb in range(3, 8): bufof[kb] = rot[(kb - 3) % 3]
        smfma(SB[0], 0, '0'); smfma(SB[1], 8, '0'); smfma(SB[2], 1, '0')
        for r in range(16):
            a(f'v_cndmask_b32 v{SB[0]+r}, v{SB[0]+r}, v{SB[1]+r}, s[{MS[r]}:{MS[r]+1}]')
        smfma(SB[1], 2, '0')
        maxes(SB[0], True)
        for kb in range(1, 8):
            if kb + 2 <= 7: smfma(bufof[kb + 2], kb + 2, '0')
            maxes(bufof[kb], False)
        va = 22 + hh
        def vread_list(kb, VF):
            return [f'ds_read_b64_tr_b16 v[{VF+4*aa+2*u}:{VF+4*aa+2*u+1}], v{va} offset:{kb*256 + aa*128 + u*64}' for aa in range(2) for u in range(2)]
        for x in vread_list(0, VFB[0]) + vread_list(8, VFB[1]): a(x)
        a(f'''
        v_mov_b32 v29, v{MX}
        v_mov_b32 v30, v{MX}
        v_permlane32_swap_b32 v29, v30
        v_max_f32 v{MX}, v29, v30
        v_sub_f32 v{MX}, 0, v{MX}
        ''')
        for r in range(16): a(f'v_mov_b32 v{NEGM+r}, v{MX}')
        CN = f'v[{NEGM}:{NEGM+15}]'
        def pv1(VF, Pd, aa, c): return f'v_mfma_f32_32x32x16_bf16 v[{O}:{O+15}], v[{VF+4*aa}:{VF+4*aa+3}], v[{Pd+4*aa}:{Pd+4*aa+3}], {c}'
        OC = f'v[{O}:{O+15}]'
        def exp_list(S, Pd):
            out = []
            for i in range(0, 8, 2):
                out += [f'v_exp_f32 v{S+2*i}, v{S+2*i}', f'v_exp_f32 v{S+2*i+1}, v{S+2*i+1}', f'v_exp_f32 v{S+2*i+2}, v{S+2*i+2}', f'v_exp_f32 v{S+2*i+3}, v{S+2*i+3}',
                        f'v_cvt_pk_bf16_f32 v{Pd+i}, v{S+2*i}, v{S+2*i+1}', f'v_cvt_pk_bf16_f32 v{Pd+i+1}, v{S+2*i+2}, v{S+2*i+3}']
            return out
        def interleave(valu, inserts):
            for i, x in enumerate(valu):
                for y in inserts.get(i, []): a(y)
                a(x)
            for y in inserts.get(len(valu), []): a(y)
        if 'cyc' in EXP and hh == 1: rt('c_p1', 8)
        smfma(SB[0], 0, CN); smfma(SB[1], 8, CN); smfma(SB[2], 1, CN)
        for r in range(16):
            a(f'v_cndmask_b32 v{SB[0]+r}, v{SB[0]+r}, v{SB[1]+r}, s[{MS[r]}:{MS[r]+1}]')
        interleave(exp_list(SB[0], PB[0]), {2: [s1(SB[1], 2, CN)], 10: [s2(SB[1], 2)]})
        for i in range(8):
            a(f'v_and_b32 v{PB[1]+i}, v{PB[0]+i}, v{M8+i}')
            a(f'v_xor_b32 v{PB[0]+i}, v{PB[0]+i}, v{PB[1]+i}')
        PX = 240
        Pof = {1: PX}
        for kb in range(2, 8): Pof[kb] = PB[kb % 2]
        a('s_waitcnt lgkmcnt(0)')
        interleave(exp_list(bufof[1], Pof[1]), {0: [pv1(VFB[0], PB[0], 0, '0')], 5: [pv1(VFB[0], PB[0], 1, OC)], 10: [pv1(VFB[1], PB[1], 0, OC)], 15: [pv1(VFB[1], PB[1], 1, OC)],
                    18: vread_list(1, VFB[0]), 20: [s1(bufof[3], 3, CN)], 24: [s2(bufof[3], 3)]})
        for kb in range(2, 8):
            prevV = VFB[(kb - 1 + 1) % 2]
            curV = VFB[(kb + 1) % 2]
            ins = {0: vread_list(kb, curV), 3: ['s_waitcnt lgkmcnt(4)', pv1(prevV, Pof[kb-1], 0, OC)], 9: [pv1(prevV, Pof[kb-1], 1, OC)]}
            if kb + 2 <= 7:
                ins[15] = [s1(bufof[kb+2], kb+2, CN)]; ins[21] = [s2(bufof[kb+2], kb+2)]
            interleave(exp_list(bufof[kb], Pof[kb]), ins)
        lastV = VFB[(7 + 1) % 2]
        if hh == 0: kreads(1)
        a('s_waitcnt lgkmcnt(%d)' % (15 if hh == 0 else 0))
        if hh == 0: a('s_nop 0')
        a(pv1(lastV, Pof[7], 0, OC)); a(pv1(lastV, Pof[7], 1, OC))
        a(f'''
        v_mov_b32 v29, v{O+8}
        v_mov_b32 v30, v{O+8}
        v_permlane32_swap_b32 v29, v30
        v_rcp_f32 v30, v30
        ''')
        if hh == 0: vm.wait_for(a, lambda t: t == ('G',))
        a('v_mul_f32 v30, v30, v13')
        for i in range(3):
            for r in range(4): a(f'v_mul_f32 v{O+4*i+r}, v{O+4*i+r}, v30')
            a(f'v_cvt_pk_bf16_f32 v{O+4*i}, v{O+4*i}, v{O+4*i+1}')
            a(f'v_cvt_pk_bf16_f32 v{O+4*i+1}, v{O+4*i+2}, v{O+4*i+3}')
        a(f'ds_write_b64 v24, v[{O}:{O+1}] offset:{40*hh}')
        a(f'ds_write_b64 v24, v[{O+4}:{O+5}] offset:{40*hh+16}')
        a(f'''
        s_mov_b64 exec, 0xffffffff
        ds_write_b64 v24, v[{O+8}:{O+9}] offset:{40*hh+32}
        s_mov_b64 exec, -1
        ''')
        if 'astage' not in EXP and 'epi' not in EXP: rt(f'att{hh}', 8)
        if 'cyc' in EXP: rt(f'c_att{hh}', 8)
    a(f'''
    s_waitcnt lgkmcnt(0)
    s_lshl_b32 s70, s93, 3
    s_lshl_b32 s64, s3, 1
    s_add_u32 s70, s70, s64
    s_mul_i32 s70, s70, {80*256}
    s_mul_i32 s64, s94, 1280
    s_add_u32 s70, s70, s64
    s_add_u32 s70, s70, {O_OFF}
    s_mul_i32 s64, s3, 2560
    s_add_u32 s64, s64, {OST}
    ''')
    for i in range(3):
        a(f'''
        v_add_u32 v2, {64*i}, v1
        v_and_b32 v3, 15, v2
        v_lshrrev_b32 v4, 4, v2
        v_cmp_le_u32 vcc, 5, v4
        v_cndmask_b32 v5, 0, 1, vcc
        v_mul_u32_u24 v6, 5, v5
        v_sub_u32 v6, v4, v6
        v_lshl_add_u32 v9, v5, 4, v3
        v_mul_u32_u24 v9, 80, v9
        v_lshl_add_u32 v9, v6, 4, v9
        v_add_u32 v9, s64, v9
        ds_read_b128 v[{32+4*i}:{35+4*i}], v9
        v_mul_u32_u24 v{10+i}, 20480, v5
        v_lshl_add_u32 v6, v6, 4, v3
        v_lshl_add_u32 v{10+i}, v6, 4, v{10+i}
        ''')
    a(f'''
    v_cmp_le_u32 vcc, 32, v1
    v_mov_b32 v9, 0x7fffff00
    v_cndmask_b32 v12, v12, v9, vcc
    ''')
    for i in range(3):
        a(f's_waitcnt lgkmcnt({2-i})')
        a(f'buffer_store_dwordx4 v[{32+4*i}:{35+4*i}], v{10+i}, {rsrc(S_WS)}, s70 offen sc1')
    a('s_waitcnt vmcnt(0)')
    count_signal(a, 0, 3, 3, 'O')
    if 'astage' not in EXP and 'epi' not in EXP: rt('attdone', 8)

def gemm2(a, C):
    rt = C.rt
    vm = VM()
    D = 3; R = 5
    DW = 4
    W_ = 's87'
    ACCG = 160; ACT = 64; WFG = [32, 48]
    def acc(mt, nt): return ACCG + (mt * 4 + nt) * 4
    def act(step, i): return ACT + (step % (D + 1)) * 24 + 4 * i
    a(f'''
    s_sub_u32 s87, s3, 4
    s_and_b32 s62, s2, 7
    s_lshr_b32 s63, s2, 3
    s_mul_i32 s64, s63, 52
    s_lshr_b32 s64, s64, 8
    s_mul_i32 s65, s64, 5
    s_sub_u32 s65, s63, s65
    s_and_b32 s61, s62, 1
    s_mul_i32 s61, s61, 5
    s_add_u32 s61, s61, s65
    s_lshr_b32 s62, s62, 1
    s_mul_i32 s60, s62, 6
    s_cmp_eq_u32 s62, 3
    s_cselect_b32 s65, 17, s60
    s_mov_b32 s60, s65
    s_cmp_ge_u32 s62, 2
    s_cselect_b32 s65, 5, 6
    s_cmp_ge_u32 s64, s65
    s_cselect_b32 s86, 1, 0
    s_add_u32 s60, s60, s64
    s_cmp_eq_u32 s86, {G2SEL}
    s_cbranch_scc1 L_g2_active
    s_waitcnt vmcnt(0)
    ''')
    count_signal(a, 4, 7, 2, 'B2')
    a('s_branch L_END')
    a.label('L_g2_active')
    a(f'''
    v_and_b32 v2, 15, v1
    v_lshrrev_b32 v3, 4, v1
    v_lshlrev_b32 v4, 4, v1
    v_lshrrev_b32 v5, 3, v1
    v_and_b32 v6, 7, v1
    v_lshlrev_b32 v7, 1, v3
    v_xor_b32 v6, v6, v7
    v_lshlrev_b32 v6, 4, v6
    ''')
    for b in range(4):
        a(f'''
        v_add_u32 v7, {8*b}, v5
        v_mul_u32_u24 v{10+b}, 1280, v7
        v_add_u32 v{10+b}, v{10+b}, v6
        ''')
    a(f'''
    s_mul_i32 s65, {W_}, {R*4096}
    s_mul_i32 s69, {W_}, {12*40960}
    s_lshl_b32 s64, s61, 7
    s_add_u32 s69, s69, s64
    s_mul_i32 s70, {W_}, {5*40960}
    s_add_u32 s70, s70, s64
    ''')
    NS = 17
    def W_list(step):
        slot = step % R
        out = []
        for b in range(4):
            def f(b=b):
                a(f's_add_u32 m0, s65, {slot*4096 + b*1024}')
                if step < 12: a(f'buffer_load_dwordx4 v{10+b}, {rsrc(S_W2)}, s69 offen lds')
                else: a(f'buffer_load_dwordx4 v{14+b}, {rsrc(S_WO)}, s70 offen lds')
                vm.issue(('W', step))
                if b == 3: a('s_add_u32 s69, s69, 40960' if step < 12 else 's_add_u32 s70, s70, 40960')
            out.append(f)
        return out
    def A_list(step):
        out = []
        if step < 12:
            for aa in range(3):
                for u in range(2):
                    def f(aa=aa, u=u):
                        r0 = act(step, 2*aa + u)
                        a(f'buffer_load_dwordx4 v[{r0}:{r0+3}], v4, {rsrc(S_WS)}, s{66+aa} offen offset:{1024*u} {LD}'); vm.issue(('A', step))
                        if u == 1: a(f's_add_u32 s{66+aa}, s{66+aa}, 2048')
                    out.append(f)
        else:
            for mt in range(6):
                def f(mt=mt):
                    r0 = act(step, mt)
                    a(f'buffer_load_dwordx4 v[{r0}:{r0+3}], v{18+mt}, {rsrc(S_WS)}, s71 offen {LD}'); vm.issue(('A', step))
                    if mt == 5: a('s_add_u32 s71, s71, 1024')
                out.append(f)
        return out
    a('s_waitcnt vmcnt(0)')
    count_signal(a, 4, 7, 2, 'B3', 7)
    for st in range(DW):
        for f in W_list(st): f()
    for b in range(4):
        a(f'''
        v_add_u32 v7, {8*b}, v5
        v_bfe_u32 v8, v7, 2, 2
        v_lshlrev_b32 v8, 3, v8
        v_lshrrev_b32 v9, 4, v7
        v_lshl_add_u32 v8, v9, 2, v8
        v_and_b32 v9, 3, v7
        v_add_u32 v8, v8, v9
        v_mul_u32_u24 v{14+b}, 1280, v8
        v_add_u32 v{14+b}, v{14+b}, v6
        ''')
    a(f'''
    s_mul_i32 s66, s60, 288
    s_mul_i32 s64, {W_}, 24
    s_add_u32 s66, s66, s64
    s_lshl_b32 s66, s66, 10
    s_add_u32 s66, s66, {H_OFF}
    s_add_u32 s67, s66, 98304
    s_add_u32 s68, s67, 98304
    s_mul_i32 s71, s60, {6*80*256}
    s_mul_i32 s64, {W_}, {5*1024}
    s_add_u32 s71, s71, s64
    s_add_u32 s71, s71, {O_OFF}
    s_mul_i32 s72, s60, 96
    s_lshr_b32 s72, s72, 7
    s_min_u32 s72, s72, 14
    s_lshl_b32 s72, s72, 4
    v_bfe_u32 v5, v1, 2, 2
    v_and_b32 v6, 3, v1
    v_lshl_add_u32 v7, v3, 2, v5
    v_bfe_u32 v8, v7, 1, 2
    v_lshlrev_b32 v7, 7, v7
    v_lshl_add_u32 v7, v6, 3, v7
    v_add_u32 v7, s65, v7
    ''')
    for mt in range(6): a(f'v_add_u32 v{18+mt}, {20480*mt}, v4')
    for nt in range(4):
        a(f'''
        v_xor_b32 v9, {nt}, v8
        v_lshl_add_u32 v{24+nt}, v9, 5, v7
        ''')
    for i in range(96): a(f'v_mov_b32 v{ACCG+i}, 0')
    poll_bcast(a, 4, 's72', 32, 2, 'H', 5, 6, CNT_LDS + 16)
    (rt('hflag', 5) if ('astage' not in EXP and 'epi' not in EXP) else None)
    for st in range(D):
        for f in A_list(st): f()
    a(f'''
    v_lshlrev_b32 v5, 2, v2
    s_mul_i32 s64, s60, 384
    s_add_u32 s64, s64, {G_OFF}
    ''')
    GR = [28, 29, 30, 31, 8, 9]
    for mt in range(6):
        a(f'buffer_load_dword v{GR[mt]}, v5, {rsrc(S_WS)}, s64 offen offset:{64*mt} {LD}'); vm.issue(('G',))
    def tr_list(step):
        W = WFG[step % 2]; slot = step % R
        return [f'ds_read_b64_tr_b16 v[{W+4*nt+2*u}:{W+4*nt+2*u+1}], v{24+nt} offset:{slot*4096 + u*2048}' for nt in range(4) for u in range(2)]
    for x in tr_list(0): a(x)
    def step_body(st, pend, nxt_tr):
        trs = tr_list(st + 1) if nxt_tr else []
        if st < 12:
            for aa in range(3):
                x0 = act(st, 2*aa); x1 = act(st, 2*aa + 1)
                a(f'v_swap_b32 v{x0+2}, v{x1}')
                a(f'v_swap_b32 v{x0+3}, v{x1+1}')
        W = WFG[st % 2]
        a('s_waitcnt lgkmcnt(0)')
        i = 0
        for nt in range(4):
            for mt in range(6):
                x = act(st, mt)
                a(f'v_mfma_f32_16x16x32_bf16 v[{acc(mt,nt)}:{acc(mt,nt)+3}], v[{W+4*nt}:{W+4*nt+3}], v[{x}:{x+3}], v[{acc(mt,nt)}:{acc(mt,nt)+3}]')
                if i % 2 == 1 and pend: pend.pop(0)()
                if i % 3 == 0 and trs: a(trs.pop(0))
                i += 1
        while trs: a(trs.pop(0))
        while pend: pend.pop(0)()
    for st in range(12):
        pend = []
        if st + D < 12: pend += A_list(st + D)
        if st + DW < NS: pend += W_list(st + DW)
        vm.wait_for(a, lambda t: t == ('A', st) or t == ('W', st + 1))
        step_body(st, pend, True)
    for f in W_list(16): f()
    for mt in range(6): a(f'v_sub_f32 v{GR[mt]}, 1.0, v{GR[mt]}')
    for mt in range(6):
        for nt in range(4):
            for r in range(4): a(f'v_mul_f32 v{acc(mt,nt)+r}, v{acc(mt,nt)+r}, v{GR[mt]}')
    rt('hdone', 5)
    poll_bcast(a, 4, 's72', 32, 3, 'O', 5, 6, CNT_LDS + 20)
    (rt('oflag', 5) if ('astage' not in EXP and 'epi' not in EXP) else None)
    for st in range(12, 16):
        for f in A_list(st): f()
    for st in range(12, 17):
        pend = []
        if st == 12: pend_after = A_list(16)
        nxt = st + 1 < NS
        vm.wait_for(a, lambda t: t == ('A', st) or (nxt and t == ('W', st + 1)))
        step_body(st, [], nxt)
        if st == 12:
            for f in pend_after: f()
    (rt('g2loop', 5) if ('astage' not in EXP and 'epi' not in EXP) else None)
    a('s_barrier')
    for w in range(4):
        a(f's_cmp_eq_u32 {W_}, {w}')
        a(f's_cbranch_scc0 L_red{w}')
        for nt in range(4):
            if nt == w: continue
            si = w if w < nt else w - 1
            for mt in range(6):
                off = ((nt * 3 + si) * 6 + mt) * 1024
                if off < 65536: a(f'ds_write_b128 v4, v[{acc(mt,nt)}:{acc(mt,nt)+3}] offset:{off}')
                else:
                    a(f'v_add_u32 v6, 65536, v4')
                    a(f'ds_write_b128 v6, v[{acc(mt,nt)}:{acc(mt,nt)+3}] offset:{off-65536}')
        a('s_waitcnt lgkmcnt(0)')
        a('s_barrier')
        k = 0; order = []
        a(f'v_add_u32 v6, {w*3*6*1024}, v4')
        for si in range(3):
            for mt in range(6):
                a(f'ds_read_b128 v[{64+4*k}:{67+4*k}], v6 offset:{(si*6+mt)*1024}'); order.append(mt); k += 1
        for k, mt in enumerate(order):
            a(f's_waitcnt lgkmcnt({min(17-k, 15)})')
            for r in range(4):
                src_r = acc(mt, w) + r if k < 6 else 136 + 4*mt + r
                a(f'v_add_f32 v{136+4*mt+r}, v{src_r}, v{64+4*k+r}')
        a('s_branch L_redone')
        a('s_nop 7')
        a.label(f'L_red{w}')
    a.label('L_redone')
    a(f'''
    s_mul_i32 s64, s60, {96*1280}
    s_lshl_b32 s71, s61, 7
    s_add_u32 s64, s64, s71
    s_lshl_b32 s71, {W_}, 5
    s_add_u32 s64, s64, s71
    v_mul_u32_u24 v5, 1280, v2
    v_lshl_add_u32 v5, v3, 3, v5
    ''')
    for mt in range(6):
        A = 136 + 4*mt
        a(f'v_cvt_pk_bf16_f32 v{A}, v{A}, v{A+1}')
        a(f'v_cvt_pk_bf16_f32 v{A+1}, v{A+2}, v{A+3}')
        a(f'v_add_u32 v6, {20480*mt}, v5')
        a(f'buffer_store_dwordx2 v[{A}:{A+1}], v6, {rsrc(S_OUT)}, s64 offen')
    rt('end', 5)

def build(stamps=False):
    a = Asm(); a.name = 'k'
    C = Ctx()
    C.rt = RT(a, stamps, RT_LDS); C.rt.stride = 44
    prologue(a, C)
    C.rt('start', 8)
    gemm1(a, C)
    a(f'''
    s_cmp_ge_u32 s3, 4
    s_cbranch_scc1 L_G2ROLE
    s_setprio {0 if 'prio' in EXP else 2}
    ''')
    n0 = C.rt.n
    attention(a, C)
    if stamps: C.rt.dump()
    a('s_branch L_END')
    a.label('L_G2ROLE')
    if 'prioG' in EXP: a('s_setprio 2')
    names_att = list(C.rt.names)
    C.rt.n = n0; C.rt.names = C.rt.names[:n0]
    gemm2(a, C)
    if stamps:
        C.rt.dump()
        print(','.join(names_att), ','.join(C.rt.names), file=sys.stderr)
    a.label('L_END')
    a('s_endpgm')
    a.finalize()
    out = [f'''; fused persistent kernel v4
; @launch grid=(256,1,1) block=(512,1,1) lds={LDS_TOTAL}
.amdgcn_target "amdgcn-amd-amdhsa--gfx950"
.text
''']
    out.append(kernel_wrap(KN + '_kernel', a.text(), 256))
    out.append('.section .rodata,"a"\n.p2align 6\n')
    out.append(kd(KN + '_kernel', 256, 102))
    return ''.join(out)

if __name__ == '__main__':
    open(sys.argv[1], 'w').write(build(len(sys.argv) > 2))
```

```python
import sys, math, os
from asm import *
from gen1 import VM, f32bits, KN, kd, kernel_wrap
from stamp import RT
EXP = os.environ.get('EXP', '')

S_X, S_WQKV, S_W1, S_W2, S_WO, S_GW, S_OUT, S_WS, S_DBG = 8, 12, 16, 20, 24, 28, 32, 36, 88
QKV_OFF = 0; H_OFF = 0x800000; O_OFF = 0xE40000; G_OFF = 0x1100000; WS_SIZE = 0x1600000
LD = '' if 'ldplain' in EXP else 'sc1'
CQ = math.log2(math.e) / math.sqrt(20.0)
LDS_TOTAL = 163840
SLOT = 32768
KV_BASE = 98304
ARR = 3104
OST = 81920
CNT_LDS = 163456
RT_LDS = 163488
OOB = 0x7ff00000
B0_BASE = 131072
G2SEL = 7 if 'nog2' in EXP else 0
FLAG_OFF = 0x1200000
EPOCH_OFF = 0x11F0000
TOK_LDS = CNT_LDS + 24

def rsrc(d): return f's[{d}:{d+3}]'
class Ctx: pass
class LG:
    def __init__(self): self.ops = []
    def issue(self, tag): self.ops.append(tag)
    def wait_for(self, a, pred):
        last = -1
        for i, t in enumerate(self.ops):
            if pred(t): last = i
        assert last >= 0
        n = len(self.ops) - 1 - last
        a('s_waitcnt lgkmcnt(%d)' % min(n, 15))

def flag_store(a, val, v0=8):
    a(f'''
    v_mov_b32 v{v0+1}, {TOK_LDS}
    ds_read_b32 v{v0}, v{v0+1}
    s_lshl_b32 s64, s92, 7
    s_add_u32 s64, s64, {FLAG_OFF + (val-1)*256*128}
    v_mov_b32 v{v0+1}, s64
    s_waitcnt lgkmcnt(0)
    s_mov_b64 exec, 1
    buffer_store_dword v{v0}, v{v0+1}, {rsrc(S_WS)}, 0 offen sc1
    s_mov_b64 exec, -1
    ''')

def count_signal(a, cnt_off, last, val, tag, v0=8):
    a(f'''
    v_mov_b32 v{v0}, {CNT_LDS + cnt_off}
    v_mov_b32 v{v0+1}, 1
    s_mov_b64 exec, 1
    ds_add_rtn_u32 v{v0+2}, v{v0}, v{v0+1}
    s_waitcnt lgkmcnt(0)
    v_readfirstlane_b32 s64, v{v0+2}
    s_mov_b64 exec, -1
    s_cmp_lg_u32 s64, {last}
    s_cbranch_scc1 L_cs{tag}
    ''')
    flag_store(a, val, v0)
    a.label(f'L_cs{tag}')

def poll(a, first_sreg, ndw, minval, tag, va, vb):
    lab = f'L_poll{tag}'; done = f'L_polld{tag}'
    add = (0x80 - minval) * 0x01010101
    a(f'''
    v_lshlrev_b32 v{va}, 2, v1
    v_cmp_gt_u32 vcc, {ndw}, v1
    v_cndmask_b32 v{va}, 0, v{va}, vcc
    v_add_u32 v{va}, {first_sreg}, v{va}
    ''')
    a.label(lab)
    a(f'''
    buffer_load_dword v{vb}, v{va}, {rsrc(S_DBG)}, 0 offen sc1
    s_waitcnt vmcnt(0)
    v_add_u32 v{vb}, {add:#x}, v{vb}
    v_and_b32 v{vb}, 0x80808080, v{vb}
    v_cmp_ne_u32 vcc, 0x80808080, v{vb}
    s_cmp_eq_u64 vcc, 0
    s_cbranch_scc1 {done}
    s_sleep 1
    s_branch {lab}
    ''')
    a.label(done)

def poll_bcast(a, leader, first_idx_sreg, nflags, phase, tag, va, vb, lds_word, sleep=2):
    a(f'''
    s_cmp_lg_u32 s3, {leader}
    s_cbranch_scc1 L_pbw{tag}
    v_mov_b32 v{va}, {TOK_LDS}
    ds_read_b32 v{vb}, v{va}
    v_cmp_gt_u32 vcc, {nflags}, v1
    v_cndmask_b32 v{va}, 0, v1, vcc
    v_add_u32 v{va}, {first_idx_sreg}, v{va}
    v_lshlrev_b32 v{va}, 7, v{va}
    v_add_u32 v{va}, {FLAG_OFF + (phase-1)*256*128}, v{va}
    s_waitcnt lgkmcnt(0)
    v_readfirstlane_b32 s85, v{vb}
    ''')
    lab = f'L_poll{tag}'; done = f'L_polld{tag}'
    a.label(lab)
    a(f'''
    buffer_load_dword v{vb}, v{va}, {rsrc(S_WS)}, 0 offen sc1
    s_waitcnt vmcnt(0)
    v_cmp_ne_u32 vcc, s85, v{vb}
    s_cmp_eq_u64 vcc, 0
    s_cbranch_scc1 {done}
    s_sleep {sleep}
    s_branch {lab}
    ''')
    a.label(done)
    a(f'''
    v_mov_b32 v{va}, {lds_word}
    v_mov_b32 v{vb}, 1
    ds_write_b32 v{va}, v{vb}
    s_waitcnt lgkmcnt(0)
    s_branch L_pbd{tag}
    ''')
    a.label(f'L_pbw{tag}')
    a(f'v_mov_b32 v{va}, {lds_word}')
    a.label(f'L_pbs{tag}')
    a(f'''
    ds_read_b32 v{vb}, v{va}
    s_waitcnt lgkmcnt(0)
    v_readfirstlane_b32 s64, v{vb}
    s_cmp_lg_u32 s64, 0
    s_cbranch_scc1 L_pbd{tag}
    s_sleep 1
    s_branch L_pbs{tag}
    ''')
    a.label(f'L_pbd{tag}')

XF = 96; ACC = 64; WF = 32
def xf(s, t): return XF + (s * 2 + t) * 4
KVS = 40

def prologue(a, C):
    a(f'''
    s_cmp_ge_u32 s2, 256
    s_cbranch_scc1 L_END
    s_load_dwordx4 s[40:43], s[0:1], 0
    s_load_dwordx2 s[44:45], s[0:1], 16
    s_load_dwordx4 s[48:51], s[0:1], 32
    s_load_dwordx4 s[52:55], s[0:1], 48
    s_load_dwordx4 s[56:59], s[0:1], 64
    v_and_b32 v1, 63, v0
    v_lshrrev_b32 v2, 6, v0
    s_and_b32 s63, s2, 7
    s_lshr_b32 s64, s2, 3
    v_readfirstlane_b32 s3, v2
    s_lshr_b32 s93, s63, 2
    s_lshl_b32 s93, s93, 3
    s_and_b32 s65, s64, 7
    s_add_u32 s93, s93, s65
    s_lshr_b32 s62, s64, 3
    s_and_b32 s94, s63, 3
    s_lshl_b32 s94, s94, 2
    s_add_u32 s94, s94, s62
    s_lshl_b32 s92, s93, 4
    s_add_u32 s92, s92, s94
    ''')

def srd(a, d, lo, size):
    a(f'''
    s_mov_b32 s{d}, s{lo}
    s_and_b32 s{d+1}, s{lo+1}, 0xffff
    s_mov_b32 s{d+2}, {size}
    s_mov_b32 s{d+3}, 0x00020000
    ''')

def gemm1(a, C):
    rt = C.rt
    vm = VM(); lg = LG()
    def acc(t, nt): return ACC + (t * 4 + nt) * 4
    def wf(ksl, nt): return WF + (ksl * 4 + nt) * 4
    a('''
    v_lshrrev_b32 v6, 3, v1
    v_lshrrev_b32 v7, 4, v1
    v_and_b32 v8, 7, v1
    s_and_b32 s74, s3, 3
    s_lshl_b32 s64, s74, 5
    v_add_u32 v9, s64, v6
    v_mul_u32_u24 v4, 1280, v9
    v_xor_b32 v10, v8, v7
    v_lshl_add_u32 v4, v10, 4, v4
    v_xor_b32 v10, 4, v10
    v_add_u32 v9, 8, v9
    v_mul_u32_u24 v5, 1280, v9
    v_lshl_add_u32 v5, v10, 4, v5
    s_mul_i32 s66, s93, 163840
    s_add_u32 s75, s66, 20480
    s_lshr_b32 s64, s74, 1
    s_lshl_b32 s64, s64, 5
    v_add_u32 v9, s64, v6
    v_and_b32 v10, 2, v6
    v_xor_b32 v10, v8, v10
    s_and_b32 s65, s74, 1
    s_lshl_b32 s65, s65, 7
    v_lshl_add_u32 v13, v10, 4, s65
    v_xor_b32 v10, 4, v10
    v_lshl_add_u32 v14, v10, 4, s65
    v_mul_u32_u24 v2, 3840, v9
    v_add_u32 v2, v2, v13
    v_add_u32 v10, 8, v9
    v_mul_u32_u24 v3, 3840, v10
    v_add_u32 v3, v3, v14
    s_lshl_b32 s67, s94, 8
    s_lshl_b32 s68, s74, 12
    s_lshr_b32 s64, s74, 1
    s_lshl_b32 s69, s64, 13
    s_and_b32 s65, s74, 1
    s_lshl_b32 s65, s65, 12
    s_add_u32 s69, s69, s65
    s_add_u32 s69, s69, 16384
    s_cmp_eq_u32 s94, 15
    s_cselect_b32 s67, 0x7ff00000, s67
    s_cselect_b32 s70, 0, %d
    s_add_u32 s76, s67, %d
    s_waitcnt lgkmcnt(0)
    ''' % (64*3840, 16*3840))
    srd(a, S_X, 40, 2048 * 1280)
    srd(a, S_WQKV, 42, 640 * 3840)
    srd(a, S_WS, 58, WS_SIZE)
    srd(a, S_DBG, 56, 256)
    a(f'''
    s_xor_b32 s64, s3, 4
    s_or_b32 s64, s64, s2
    s_cmp_lg_u32 s64, 0
    s_cbranch_scc1 L_notok
    v_mov_b32 v8, {EPOCH_OFF}
    buffer_load_dword v9, v8, {rsrc(S_WS)}, 0 offen sc1
    s_waitcnt vmcnt(0)
    v_add_u32 v9, 1, v9
    v_mov_b32 v10, v9
    v_mov_b32 v11, 0x5a5a5a5a
    v_mov_b32 v14, 0
    s_mov_b64 exec, 1
    buffer_store_dword v9, v8, {rsrc(S_WS)}, 0 offen sc1
    buffer_store_dwordx2 v[10:11], v14, {rsrc(S_DBG)}, 0 offen sc1
    s_mov_b64 exec, -1
    ''')
    a.label('L_notok')
    def dma_A(sg):
        slot = (sg % 4) * SLOT
        out = []
        for i in range(4):
            def f(i=i):
                a(f's_add_u32 m0, s68, {slot + 1024*i}')
                a(f'buffer_load_dwordx4 v{4+(i&1)}, {rsrc(S_X)}, s{66 if i < 2 else 75} offen lds'); vm.issue(('A', sg))
                if i == 3: a('s_add_u32 s66, s66, 128\ns_add_u32 s75, s75, 128')
            out.append(f)
        for i in range(4):
            def f(i=i):
                a(f's_add_u32 m0, s69, {slot + 1024*i}')
                a(f'buffer_load_dwordx4 v{2+(i&1)}, {rsrc(S_WQKV)}, s{67 if i < 2 else 76} offen lds'); vm.issue(('A', sg))
                if i == 3: a('s_add_u32 s67, s67, s70\ns_add_u32 s76, s76, s70')
            out.append(f)
        return out
    def lo4(fn, tag):
        a(f's_cmp_ge_u32 s3, 4\ns_cbranch_scc1 L_lo{tag}')
        fn()
        a.label(f'L_lo{tag}')
    lo4(lambda: [f() for sg in range(3) for f in dma_A(sg)], 'p')
    pass
    srd(a, S_W1, 48, 640 * 3072)
    srd(a, S_GW, 52, 1280)
    srd(a, S_WO, 44, 640 * 1280)
    srd(a, S_W2, 50, 1536 * 1280)
    srd(a, S_OUT, 54, 2048 * 1280)
    if 'tlb' in EXP:
        a(f'''
        s_cmp_lt_u32 s3, 4
        s_cbranch_scc1 L_tlbdone
        v_lshlrev_b32 v8, 16, v1
        v_add_u32 v8, 0x8000, v8
        s_cmp_eq_u32 s3, 4
        s_cbranch_scc0 L_tlb5
        buffer_load_dword v254, v8, {rsrc(S_WQKV)}, 0 offen
        buffer_load_dword v254, v8, {rsrc(S_W1)}, 0 offen
        buffer_load_dword v254, v8, {rsrc(S_X)}, 0 offen
        s_branch L_tlbdone
        ''')
        a.label('L_tlb5')
        a(f'''
        s_cmp_eq_u32 s3, 5
        s_cbranch_scc0 L_tlb6
        buffer_load_dword v254, v8, {rsrc(S_W2)}, 0 offen
        buffer_load_dword v254, v8, {rsrc(S_WO)}, 0 offen
        buffer_load_dword v254, v8, {rsrc(S_OUT)}, 0 offen
        s_branch L_tlbdone
        ''')
        a.label('L_tlb6')
        a(f'''
        s_sub_u32 s64, s3, 6
        s_mul_i32 s64, s64, {3*64*65536}
        buffer_load_dword v254, v8, {rsrc(S_WS)}, s64 offen {LD}
        s_add_u32 s64, s64, {64*65536}
        buffer_load_dword v254, v8, {rsrc(S_WS)}, s64 offen {LD}
        s_add_u32 s64, s64, {64*65536}
        buffer_load_dword v254, v8, {rsrc(S_WS)}, s64 offen {LD}
        ''')
        a.label('L_tlbdone')
    a(f'''
    s_cmp_ge_u32 s3, 6
    s_cbranch_scc1 L_noones
    s_lshl_b32 s64, s3, 9
    v_lshl_add_u32 v8, v1, 3, s64
    v_add_u32 v8, {KV_BASE + 20*ARR}, v8
    v_mov_b32 v10, 0x3f80
    v_mov_b32 v11, 0
    ds_write_b64 v8, v[10:11]
    v_mov_b32 v8, {CNT_LDS}
    v_mov_b32 v10, 0
    ds_write_b64 v8, v[10:11]
    ds_write_b64 v8, v[10:11] offset:8
    ds_write_b64 v8, v[10:11] offset:16
    ''')
    a.label('L_noones')
    for b in range(3):
        a(f'''
        v_add_u32 v8, {64*b}, v1
        v_mul_u32_u24 v9, 171, v8
        v_lshrrev_b32 v9, 10, v9
        v_mul_u32_u24 v10, 6, v9
        v_sub_u32 v10, v8, v10
        v_bfe_u32 v14, v9, 2, 2
        v_lshlrev_b32 v14, 3, v14
        v_lshrrev_b32 v15, 4, v9
        v_lshl_add_u32 v14, v15, 2, v14
        v_and_b32 v15, 3, v9
        v_add_u32 v14, v14, v15
        v_mul_u32_u24 v{11+b}, 3072, v14
        v_lshl_add_u32 v{11+b}, v10, 4, v{11+b}
        ''')
    a('''
    s_lshr_b32 s64, s3, 1
    s_mul_i32 s71, s64, 98304
    s_mul_i32 s65, s94, 192
    s_add_u32 s71, s71, s65
    s_and_b32 s65, s3, 1
    s_mul_i32 s65, s65, 96
    s_add_u32 s71, s71, s65
    s_mul_i32 s72, s3, 3072
    ''')
    def dma_B(j):
        slot = B0_BASE if j == 0 else ((9 + j) % 4) * SLOT
        out = []
        for b in range(3):
            def f(b=b):
                a(f's_add_u32 m0, s72, {slot + 1024*b}')
                a(f'buffer_load_dwordx4 v{11+b}, {rsrc(S_W1)}, s71 offen lds'); vm.issue(('B', j))
                if b == 2: a(f's_add_u32 s71, s71, {128*3072}')
            out.append(f)
        return out
    a('''
    v_and_b32 v6, 15, v1
    v_lshrrev_b32 v8, 1, v6
    v_xor_b32 v9, v7, v8
    s_and_b32 s64, s3, 3
    s_lshl_b32 s64, s64, 12
    v_lshlrev_b32 v10, 7, v6
    v_add_u32 v10, s64, v10
    v_lshl_add_u32 v16, v9, 4, v10
    v_xor_b32 v9, 4, v9
    v_lshl_add_u32 v17, v9, 4, v10
    v_add_u32 v18, 0x10000, v16
    v_add_u32 v19, 0x10000, v17
    v_bfe_u32 v8, v1, 2, 2
    v_and_b32 v9, 3, v1
    v_lshrrev_b32 v10, 1, v8
    v_and_b32 v14, 1, v7
    v_lshl_or_b32 v10, v14, 1, v10
    v_lshl_add_u32 v14, v7, 3, v8
    v_lshlrev_b32 v14, 7, v14
    v_lshl_add_u32 v14, v9, 3, v14
    s_lshr_b32 s64, s3, 2
    s_lshl_b32 s65, s64, 12
    s_add_u32 s65, s65, 16384
    v_add_u32 v14, s65, v14
    ''')
    for nt in range(4):
        a(f'''
        v_xor_b32 v15, {nt}, v10
        v_lshl_add_u32 v{20+nt}, v15, 5, v14
        v_add_u32 v{24+nt}, 0x10000, v{20+nt}
        ''')
    a('''
    v_lshl_add_u32 v14, v7, 2, v8
    v_mul_u32_u24 v28, 96, v14
    v_lshl_add_u32 v28, v9, 3, v28
    s_mul_i32 s65, s64, 3072
    v_add_u32 v28, s65, v28
    v_add_u32 v29, 0x10000, v28
    v_add_u32 v31, 0x20000, v28
    v_lshlrev_b32 v30, 4, v1
    ''')
    for i in range(32): a(f'v_mov_b32 v{ACC+i}, 0')
    def xaddr(sg, ksl):
        sl = sg % 4
        return (16 + ksl + (2 if sl >= 2 else 0), (sl % 2) * SLOT)
    def waddr(sg, nt):
        sl = sg % 4
        return (20 + nt + (4 if sl >= 2 else 0), (sl % 2) * SLOT)
    def xread_list(sg):
        out = []
        for ksl in range(2):
            va, off = xaddr(sg, ksl)
            for t in range(2):
                r0 = xf(2*sg + ksl, t)
                out.append((f'ds_read_b128 v[{r0}:{r0+3}], v{va} offset:{off + 2048*t}', ('x', sg, ksl)))
        return out
    def wread(sg, ksl, nt):
        va, off = waddr(sg, nt)
        W = wf(ksl, nt)
        for u in range(2):
            a(f'ds_read_b64_tr_b16 v[{W+2*u}:{W+2*u+1}], v{va} offset:{off + ksl*8192 + 512*u}'); lg.issue(('w', sg, ksl, nt))
    nB = [0]
    def tok_early(tag):
        a(f'''
        s_cmp_lg_u32 s3, 0
        s_cbranch_scc1 L_te{tag}
        v_mov_b32 v14, 0
        buffer_load_dwordx2 v[14:15], v14, {rsrc(S_DBG)}, 0 offen sc1
        ''')
        a.label(f'L_te{tag}')
    def next_dmas(sg):
        if sg + 3 < 10: return dma_A(sg + 3)
        r = dma_B(nB[0]); nB[0] += 1
        return r
    TOUCH = 'notouch' not in EXP
    if TOUCH:
        a('''
        s_lshr_b32 s64, s2, 3
        s_bfe_u32 s65, s2, 0x10002
        s_lshl_b32 s65, s65, 10
        s_lshl_b32 s73, s64, 5
        s_add_u32 s65, s65, s73
        v_and_b32 v8, 31, v1
        v_add_u32 v9, s65, v8
        v_mul_u32_u24 v9, 1280, v9
        v_lshrrev_b32 v10, 5, v1
        v_lshl_add_u32 v9, v10, 7, v9
        v_lshlrev_b32 v10, 6, v7
        v_bfe_u32 v14, v1, 3, 1
        v_add_u32 v10, v10, v14
        s_lshl_b32 s73, s64, 1
        v_add_u32 v10, s73, v10
        v_mul_u32_u24 v10, 3840, v10
        v_and_b32 v14, 7, v1
        v_lshl_add_u32 v10, v14, 7, v10
        s_and_b32 s65, s2, 3
        s_lshl_b32 s73, s65, 10
        v_add_u32 v10, s73, v10
        s_and_b32 s73, s3, 1
        s_lshl_b32 s73, s73, 6
        v_add_u32 v8, s73, v1
        v_mul_u32_u24 v14, 0x2aab, v8
        v_lshrrev_b32 v14, 16, v14
        v_mul_u32_u24 v15, 6, v14
        v_sub_u32 v15, v8, v15
        s_mul_i32 s64, s64, 20
        v_add_u32 v14, s64, v14
        v_mul_u32_u24 v14, 3072, v14
        v_lshl_add_u32 v14, v15, 7, v14
        s_mul_i32 s65, s65, 768
        v_add_u32 v14, s65, v14
        v_cmp_gt_u32 vcc, 120, v8
        v_mov_b32 v15, 0x7fffff00
        v_cndmask_b32 v8, v15, v14, vcc
        ''')
    def only_wave(wv, txt, tag):
        a(f's_cmp_lg_u32 s3, {wv}')
        a(f's_cbranch_scc1 L_t{tag}')
        a(txt)
        a.label(f'L_t{tag}')
    def touches(sg, pfx):
        if not TOUCH: return
        TD = 255
        if sg == 0:
            only_wave(0, f'buffer_load_dword v{TD}, v9, {rsrc(S_X)}, 0 offen offset:{128*5}', pfx + 'x0')
            only_wave(2, f's_mov_b32 s73, {64*3840*5}\nbuffer_load_dword v{TD}, v10, {rsrc(S_WQKV)}, s73 offen', pfx + 'w0')
            only_wave(3, f's_mov_b32 s73, {64*3840*7}\nbuffer_load_dword v{TD}, v10, {rsrc(S_WQKV)}, s73 offen', pfx + 'w1')
        if sg == 1:
            only_wave(1, f'buffer_load_dword v{TD}, v9, {rsrc(S_X)}, 0 offen offset:{128*9}', pfx + 'x1')
            only_wave(4, f's_mov_b32 s73, {64*3840*9}\nbuffer_load_dword v{TD}, v10, {rsrc(S_WQKV)}, s73 offen', pfx + 'w2')
        if sg == 2:
            for wv in (5, 6, 7, 0):
                only_wave(wv, f'buffer_load_dword v{TD}, v8, {rsrc(S_W1)}, 0 offen', pfx + f'b{wv}')
    a('''
    s_cmp_eq_u32 s94, 15
    s_cbranch_scc1 L_GWG
    ''')
    vm_save = list(vm.ops)
    def all_touches(pfx, part):
        if not TOUCH: return
        TD = 255
        if part == 0:
            if 'tw' in EXP: only_wave(6, f's_mov_b32 s73, {64*3840*4}\nbuffer_load_dword v{TD}, v10, {rsrc(S_WQKV)}, s73 offen', pfx + 'w0')
            if 'tx' in EXP: only_wave(7, f'buffer_load_dword v{TD}, v9, {rsrc(S_X)}, 0 offen offset:{128*4}', pfx + 'x0')
        if part == 1:
            if 'tx' in EXP: only_wave(7, f'buffer_load_dword v{TD}, v9, {rsrc(S_X)}, 0 offen offset:{128*6}', pfx + 'x1')
        if part == 2:
            if 'tw' in EXP: only_wave(6, f's_mov_b32 s73, {64*3840*8}\nbuffer_load_dword v{TD}, v10, {rsrc(S_WQKV)}, s73 offen', pfx + 'w1')
            if 'tx' in EXP: only_wave(7, f'buffer_load_dword v{TD}, v9, {rsrc(S_X)}, 0 offen offset:{128*8}', pfx + 'x2')
        if part == 3:
            only_wave(4, f'buffer_load_dword v{TD}, v8, {rsrc(S_W1)}, 0 offen', pfx + 'b0')
            only_wave(5, f'buffer_load_dword v{TD}, v8, {rsrc(S_W1)}, 0 offen', pfx + 'b1')
    def phaseA(role):
        nB[0] = 0
        lg.ops = []
        if role == 'lo':
            vm.ops = list(vm_save)
            vm.wait_for(a, lambda t: t == ('A', 0))
        else:
            vm.ops = []
        a('s_barrier')
        for txt, tag in xread_list(0): a(txt); lg.issue(tag)
        for ksl in range(2):
            for nt in range(4): wread(0, ksl, nt)
        for sg in range(10):
            if role == 'lo' and sg + 1 < 10: vm.wait_for(a, lambda t: t == ('A', sg + 1))
            if sg == 9: a('s_waitcnt lgkmcnt(0)')
            a('s_barrier')
            if sg == 7 and role == 'lo': tok_early('n')
            if role == 'hi' and sg < 4: all_touches('h', sg)
            if sg + 3 < 10: dm = dma_A(sg + 3) if role == 'lo' else []
            else:
                dm = dma_B(sg - 6)
            if sg == 1: dm = dm + dma_B(0)
            more = sg + 1 < 10
            xr = xread_list(sg + 1) if more else []
            pi = 0
            for ksl in range(2):
                for nt in range(4):
                    if pi < len(xr): a(xr[pi][0]); lg.issue(xr[pi][1])
                    lg.wait_for(a, lambda t: t in (('w', sg, ksl, nt), ('x', sg, ksl)))
                    if dm and (len(dm) > 4 or pi % 2 == 0): dm.pop(0)()
                    if len(dm) > 8 - pi: dm.pop(0)()
                    for t in range(2):
                        x = xf(2*sg + ksl, t)
                        a(f'v_mfma_f32_16x16x32_bf16 v[{acc(t,nt)}:{acc(t,nt)+3}], v[{wf(ksl,nt)}:{wf(ksl,nt)+3}], v[{x}:{x+3}], v[{acc(t,nt)}:{acc(t,nt)+3}]')
                    if more: wread(sg + 1, ksl, nt)
                    pi += 1
            while dm: dm.pop(0)()
            if ('astage' in EXP and sg in (0, 1, 2, 4, 6, 8)) or ('epi' in EXP and sg in (6, 8)):
                rt(f'A{sg}', 14 if sg < 5 else 8)
    a('s_cmp_ge_u32 s3, 4\ns_cbranch_scc1 L_AHI')
    n_rt0 = rt.n; names0 = list(rt.names)
    phaseA('lo')
    vm_lo = list(vm.ops)
    a('s_branch L_AEPI')
    a.label('L_AHI')
    rt.n = n_rt0; rt.names = list(names0)
    phaseA('hi')
    a.label('L_AEPI')
    if 'epi' in EXP: rt('A9', 8)
    vm.ops = [('B', 0)] * 3 + [('B', 1)] * 3 + [('B', 2)] * 3 + [('B', 3)] * 3
    a(f'''
    v_lshlrev_b32 v8, 14, v7
    v_and_b32 v9, 14, v6
    v_lshl_add_u32 v8, v9, 3, v8
    v_and_b32 v9, 1, v6
    v_lshl_add_u32 v8, v9, 7, v8
    v_cmp_eq_u32 s[74:75], 0, v9
    s_lshl_b32 s64, s94, 5
    s_lshr_b32 s65, s3, 2
    s_lshl_b32 s65, s65, 4
    s_add_u32 s64, s64, s65
    s_lshl_b32 s64, s64, 14
    s_lshl_b32 s65, s93, 7
    s_and_b32 s73, s3, 3
    s_lshl_b32 s73, s73, 5
    s_add_u32 s65, s65, s73
    s_lshl_b32 s65, s65, 3
    s_add_u32 s64, s64, s65
    s_add_u32 s64, s64, {QKV_OFF}
    s_cmp_lt_u32 s94, 5
    s_cselect_b32 s65, {f32bits(CQ):#x}, 1.0
    ''')
    EV = 's[74:75]'
    for nt in range(4):
        A0 = acc(0, nt); A1 = acc(1, nt); T = WF + 8*nt
        for A in (A0, A1):
            for r in range(4): a(f'v_mul_f32 v{A+r}, s65, v{A+r}')
            a(f'v_cvt_pk_bf16_f32 v{A}, v{A}, v{A+1}')
            a(f'v_cvt_pk_bf16_f32 v{A+1}, v{A+2}, v{A+3}')
        a(f'v_cndmask_b32 v{T}, v{A0}, v{A1}, {EV}')
        a(f'v_cndmask_b32 v{T+1}, v{A0+1}, v{A1+1}, {EV}')
        a(f'v_mov_b32_dpp v{T+2}, v{T} quad_perm:[1,0,3,2] row_mask:0xf bank_mask:0xf')
        a(f'v_mov_b32_dpp v{T+3}, v{T+1} quad_perm:[1,0,3,2] row_mask:0xf bank_mask:0xf')
        a(f'v_cndmask_b32 v{T+4}, v{T+2}, v{A0}, {EV}')
        a(f'v_cndmask_b32 v{T+5}, v{T+3}, v{A0+1}, {EV}')
        a(f'v_cndmask_b32 v{T+6}, v{A1}, v{T+2}, {EV}')
        a(f'v_cndmask_b32 v{T+7}, v{A1+1}, v{T+3}, {EV}')
        a(f'buffer_store_dwordx4 v[{T+4}:{T+7}], v8, {rsrc(S_WS)}, s64 offen sc1'); vm.issue(('ST',))
        a('s_add_u32 s64, s64, 65536')
    if 'epi' in EXP: rt('stored', 8)
    vm.wait_for(a, lambda t: t == ('B', 0))
    if 'epi' in EXP: rt('b0w', 8)
    vmA_tail = list(vm.ops)
    a('s_branch L_AJOIN')
    a.label('L_GWG')
    vm.ops = list(vm_save); nB[0] = 0
    a('v_lshlrev_b32 v20, 4, v7')
    GSAFE = True
    GACC = ACC
    def gw_wait(s):
        idx = max(i for i, t in enumerate(vm.ops) if t == ('GW', s))
        n = sum(1 for t in vm.ops[idx+1:] if t[0] != 'A')
        a(f's_waitcnt vmcnt({n})')
    for s in range(8):
        a(f'buffer_load_dwordx4 v[{WF+4*s}:{WF+4*s+3}], v20, {rsrc(S_GW)}, 0 offen offset:{64*s}'); vm.issue(('GW', s))
    for sg in range(10):
        vm.wait_for(a, lambda t: t == ('A', sg))
        a('s_barrier')
        if sg == 7: tok_early('g')
        if sg + 3 < 10: lo4(lambda: [f() for f in dma_A(sg + 3)], f'g{sg}')
        else:
            for f in dma_B(sg - 6): f()
        if sg == 1:
            for f in dma_B(0): f()
        for txt, tag in xread_list(sg): a(txt)
        for ksl in range(2):
            s = 2*sg + ksl
            gw_wait(s)
            a(f's_waitcnt lgkmcnt({2 if ksl == 0 else 0})')
            for t in range(2):
                x = xf(s, t)
                a(f'v_mfma_f32_16x16x32_bf16 v[{GACC+4*t}:{GACC+4*t+3}], v[{WF+4*(s%8)}:{WF+4*(s%8)+3}], v[{x}:{x+3}], v[{GACC+4*t}:{GACC+4*t+3}]')
            if s + 8 < 20:
                a(f'buffer_load_dwordx4 v[{WF+4*(s%8)}:{WF+4*(s%8)+3}], v20, {rsrc(S_GW)}, 0 offen offset:{64*(s+8)}'); vm.issue(('GW', s + 8))
    a('s_nop 0')
    for t in range(2):
        z = GACC + 4*t
        a(f'''
        v_mul_f32 v{z}, {f32bits(-math.log2(math.e)):#x}, v{z}
        v_exp_f32 v{z}, v{z}
        v_add_f32 v{z}, 1.0, v{z}
        v_rcp_f32 v{z}, v{z}
        ''')
    a(f'''
    v_lshlrev_b32 v8, 2, v6
    v_cmp_gt_u32 vcc, 16, v1
    v_mov_b32 v9, 0x7fffff00
    v_cndmask_b32 v8, v9, v8, vcc
    s_lshl_b32 s64, s93, 7
    s_and_b32 s65, s3, 3
    s_lshl_b32 s65, s65, 5
    s_add_u32 s64, s64, s65
    s_lshl_b32 s64, s64, 2
    s_add_u32 s64, s64, {G_OFF}
    buffer_store_dword v{GACC}, v8, {rsrc(S_WS)}, s64 offen sc1
    buffer_store_dword v{GACC+4}, v8, {rsrc(S_WS)}, s64 offen offset:64 sc1
    s_waitcnt vmcnt(2)
    ''')
    a.label('L_AJOIN')
    a(f'''
    s_cmp_lg_u32 s3, 0
    s_cbranch_scc1 L_tokdone
    v_readfirstlane_b32 s64, v15
    s_cmp_lg_u32 s64, 0
    s_cbranch_scc1 L_tokok
    ''')
    a.label('L_tokpoll')
    a(f'''
    v_mov_b32 v14, 0
    buffer_load_dwordx2 v[14:15], v14, {rsrc(S_DBG)}, 0 offen sc1
    s_waitcnt vmcnt(0)
    v_readfirstlane_b32 s64, v15
    s_cmp_lg_u32 s64, 0
    s_cbranch_scc0 L_tokpoll
    ''')
    a.label('L_tokok')
    a(f'''
    v_mov_b32 v8, {TOK_LDS}
    ds_write_b32 v8, v14
    ''')
    a.label('L_tokdone')
    if 'epi' in EXP: rt('tok', 8)
    a('s_waitcnt lgkmcnt(0)')
    a('s_barrier')
    rt('Ajoin', 8)
    vm.ops = list(vmA_tail)
    def accB(t, nt): return ACC + (t * 3 + nt) * 4
    def wfB(k, nt): return WF + ((k % 2) * 3 + nt) * 4
    def wreadB(k, nt):
        j = k // 4; ksl = k % 4
        if j == 0:
            va = 31; off = ksl * 6144 + nt * 32
        else:
            sl = (9 + j) % 4
            va = 28 + (1 if sl >= 2 else 0)
            off = (sl % 2) * SLOT + ksl * 6144 + nt * 32
        W = wfB(k, nt)
        for u in range(2):
            a(f'ds_read_b64_tr_b16 v[{W+2*u}:{W+2*u+1}], v{va} offset:{off + 1536*u}'); lg.issue(('wb', k, nt))
    lg.ops = []
    for k in range(2):
        for nt in range(3): wreadB(k, nt)
    for i in range(24): a(f'v_mov_b32 v{ACC+i}, 0')
    pend = dma_B(4)
    G2T = 'nog2t' not in EXP
    if G2T:
        a('''
        s_and_b32 s62, s2, 7
        s_lshr_b32 s63, s2, 3
        s_mul_i32 s60, s63, 52
        s_lshr_b32 s60, s60, 8
        s_mul_i32 s61, s60, 5
        s_sub_u32 s61, s63, s61
        s_and_b32 s62, s62, 1
        s_mul_i32 s62, s62, 5
        s_add_u32 s61, s61, s62
        s_lshl_b32 s61, s61, 7
        s_mul_i32 s60, s60, 1280
        s_add_u32 s61, s61, s60
        v_mul_u32_u24 v9, 7680, v1
        ''')
    def g2touch(i):
        wv = 4 + (i & 3)
        srd_ = S_W2 if i < 4 else S_WO
        base = (i if i < 4 else i - 4) * 64 * 7680
        a(f'''
        s_cmp_lg_u32 s3, {wv}
        s_cbranch_scc1 L_g2t{i}
        s_add_u32 s62, s61, {base}
        buffer_load_dword v10, v9, {rsrc(srd_)}, s62 offen
        ''')
        a.label(f'L_g2t{i}')
    for k in range(20):
        if G2T and k in (3, 4, 5, 7, 8, 9): g2touch({3: 0, 4: 1, 5: 2, 7: 3, 8: 4, 9: 5}[k])
        if k == 2:
            vm.wait_for(a, lambda t: t == ('B', 1))
            a('s_barrier')
        if k == 6:
            vm.wait_for(a, lambda t: t == ('ST',))
            a('s_barrier')
            a('s_cmp_lg_u32 s3, 0\ns_cbranch_scc1 L_sigA')
            flag_store(a, 1)
            a.label('L_sigA')
        if k == 14:
            vm.wait_for(a, lambda t: t == ('B', 4))
            a('s_barrier')
        for nt in range(3):
            lg.wait_for(a, lambda t: t == ('wb', k, nt))
            if pend and nt != 1: pend.pop(0)()
            for t in range(2):
                x = xf(k, t)
                a(f'v_mfma_f32_16x16x32_bf16 v[{accB(t,nt)}:{accB(t,nt)+3}], v[{wfB(k,nt)}:{wfB(k,nt)+3}], v[{x}:{x+3}], v[{accB(t,nt)}:{accB(t,nt)+3}]')
            if k + 2 < 20: wreadB(k + 2, nt)
    assert not pend
    if 'cyc' not in EXP and 'astage' not in EXP and 'epi' not in EXP: rt('Bdone', 8)
    a(f'''
    s_lshl_b32 s64, s93, 2
    s_and_b32 s65, s3, 3
    s_add_u32 s64, s64, s65
    s_mul_i32 s64, s64, 96
    s_mul_i32 s65, s94, 6
    s_add_u32 s64, s64, s65
    s_lshr_b32 s65, s3, 2
    s_mul_i32 s65, s65, 3
    s_add_u32 s64, s64, s65
    s_lshl_b32 s64, s64, 10
    s_add_u32 s64, s64, {H_OFF}
    ''')
    for nt in range(3):
        D0 = WF + 4*nt
        for t in range(2):
            A = accB(t, nt)
            for r in range(4): a(f'v_max_f32 v{A+r}, 0, v{A+r}')
            a(f'v_cvt_pk_bf16_f32 v{D0+2*t}, v{A}, v{A+1}')
            a(f'v_cvt_pk_bf16_f32 v{D0+2*t+1}, v{A+2}, v{A+3}')
        a(f'buffer_store_dwordx4 v[{D0}:{D0+3}], v30, {rsrc(S_WS)}, s64 offen offset:{1024*nt} sc1'); vm.issue(('STH',))
    a('s_barrier')
    if 'astage' not in EXP and 'epi' not in EXP: rt('Bbar', 8)

def attention(a, C):
    rt = C.rt
    vm = VM()
    KF = 32; QR = [104, 232]
    a('''
    s_sub_i32 s64, s93, 2
    s_max_i32 s64, s64, 0
    s_lshl_b32 s64, s64, 4
    v_lshlrev_b32 v30, 4, v1
    ''')
    a(f'''
    s_lshr_b32 s65, s3, 1
    s_mul_i32 s65, s65, 160
    s_add_u32 s65, s65, 160
    s_mul_i32 s70, s94, 10
    s_add_u32 s65, s65, s70
    s_and_b32 s70, s3, 1
    s_mul_i32 s70, s70, 5
    s_add_u32 s65, s65, s70
    s_lshl_b32 s65, s65, 14
    s_mul_i32 s66, s3, {5*ARR}
    s_add_u32 s66, s66, {KV_BASE}
    ''')
    for b in range(3):
        a(f'''
        s_add_u32 s70, s93, {b}
        s_sub_i32 s70, s70, 2
        s_lshl_b32 s71, s70, 10
        s_add_u32 s71, s71, s65
        s_cmp_lt_i32 s70, 0
        s_cselect_b32 s{67+b}, {OOB:#x}, s71
        s_cselect_b32 s{60+b}, 0, 16384
        ''')
    a('s_mov_b32 s59, s64')
    a('s_waitcnt vmcnt(0)')
    count_signal(a, 4, 7, 2, 'B1')
    poll_bcast(a, 0, 's59', 48, 1, 'KV', 8, 9, CNT_LDS + 12)
    if 'astage' not in EXP and 'epi' not in EXP: rt('qkvflag', 8)
    for c in range(5):
        for b in range(3):
            a(f's_add_u32 m0, s66, {c*ARR + b*1024}')
            a(f'buffer_load_dwordx4 v30, {rsrc(S_WS)}, s{67+b} offen {LD} lds'); vm.issue(('KV',))
            a(f's_add_u32 s{67+b}, s{67+b}, s{60+b}')

    SB = [112, 128, 144]; NEGM = 160; PB = [176, 184]; VFB = [192, 200]; O = 208; M8 = 224
    a(f'''
    s_lshl_b32 s74, s93, 7
    s_lshl_b32 s70, s3, 5
    s_add_u32 s74, s74, s70
    v_and_b32 v5, 31, v1
    v_lshrrev_b32 v6, 5, v1
    v_add_u32 v7, s74, v5
    v_lshlrev_b32 v8, 3, v7
    v_lshl_add_u32 v9, v6, 15, v8
    v_add_u32 v10, 65536, v8
    v_cmp_eq_u32 vcc, 0, v6
    v_mov_b32 v11, 0x7fffff00
    v_cndmask_b32 v10, v11, v10, vcc
    s_mul_i32 s70, s94, {10*16384}
    s_add_u32 s70, s70, {QKV_OFF}
    ''')
    for hh in range(2):
        Q0 = QR[hh]
        a(f'''
        s_add_u32 s71, s70, 16384
        buffer_load_dwordx2 v[{Q0}:{Q0+1}], v9, {rsrc(S_WS)}, s70 offen {LD}
        buffer_load_dwordx2 v[{Q0+2}:{Q0+3}], v9, {rsrc(S_WS)}, s71 offen {LD}
        buffer_load_dwordx2 v[{Q0+4}:{Q0+5}], v10, {rsrc(S_WS)}, s70 offen {LD}
        s_add_u32 s70, s70, {5*16384}
        ''')
        for _ in range(3): vm.issue(('Q', hh))
    a(f'''
    v_lshlrev_b32 v12, 2, v7
    s_mov_b32 s70, {G_OFF}
    buffer_load_dword v13, v12, {rsrc(S_WS)}, s70 offen {LD}
    v_mov_b32 v11, 0x3f80
    '''); vm.issue(('G',))
    for hh in range(2):
        a(f'v_cndmask_b32 v{QR[hh]+6}, 0, v11, vcc')
        a(f'v_mov_b32 v{QR[hh]+7}, 0')
    a(f'''
    s_lshl_b32 s70, s3, 8
    s_add_u32 s70, s70, {KV_BASE}
    v_lshlrev_b32 v19, 3, v5
    v_add_u32 v19, s70, v19
    v_add_u32 v20, {4*ARR}, v19
    v_mul_u32_u24 v21, {2*ARR}, v6
    v_add_u32 v19, v19, v21
    ''')
    def kreads(hh):
        ko = hh * 5 * ARR
        for kb in (0, 8, 1, 2, 3, 4, 5, 6, 7):
            a(f'ds_read_b64 v[{KF+8*kb}:{KF+8*kb+1}], v19 offset:{ko + kb*256}')
            a(f'ds_read_b64 v[{KF+8*kb+2}:{KF+8*kb+3}], v19 offset:{ko + kb*256 + ARR}')
            a(f'ds_read_b64 v[{KF+8*kb+4}:{KF+8*kb+5}], v20 offset:{ko + kb*256}')
    MS_PLACEHOLDER = None
    MS = [40 + 2*i for i in range(10)] + [76 + 2*i for i in range(6)]
    a('''
    v_lshlrev_b32 v14, 2, v6
    v_sub_u32 v14, v5, v14
    ''')
    for r in range(16):
        c = 8*(r >> 2) + (r & 3)
        a(f'v_cmp_le_i32 s[{MS[r]}:{MS[r]+1}], {c}, v14')
    a('v_mov_b32 v15, 0xffff')
    a('v_mov_b32 v16, 0xffff0000')
    for i in range(8):
        a(f'''
        v_cndmask_b32 v17, 0, v15, s[{MS[2*i]}:{MS[2*i]+1}]
        v_cndmask_b32 v18, 0, v16, s[{MS[2*i+1]}:{MS[2*i+1]+1}]
        v_or_b32 v{M8+i}, v17, v18
        ''')
    a('''
    s_lshr_b32 s75, s74, 5
    s_sub_i32 s75, 8, s75
    s_max_i32 s75, s75, 0
    ''')
    for kb in range(9):
        a(f'''
        s_cmp_gt_u32 s75, {kb}
        s_cselect_b32 s70, 0xf149, 0
        v_mov_b32 v{KF+8*kb+6}, s70
        v_mov_b32 v{KF+8*kb+7}, 0
        ''')
    a(f'''
    s_lshl_b32 s70, s3, 8
    s_add_u32 s70, s70, {KV_BASE}
    v_bfe_u32 v21, v1, 4, 1
    v_bfe_u32 v22, v1, 2, 2
    v_and_b32 v23, 3, v1
    v_lshl_add_u32 v23, v21, 2, v23
    v_lshl_add_u32 v22, v6, 2, v22
    v_lshlrev_b32 v22, 3, v22
    v_add_u32 v22, s70, v22
    v_cmp_gt_u32 vcc, 5, v23
    v_add_u32 v24, 10, v23
    v_mov_b32 v25, 20
    v_cndmask_b32 v24, v25, v24, vcc
    v_add_u32 v26, 15, v23
    v_cndmask_b32 v26, v25, v26, vcc
    v_mul_u32_u24 v24, {ARR}, v24
    v_mul_u32_u24 v26, {ARR}, v26
    v_add_u32 v23, v22, v26
    v_add_u32 v22, v22, v24
    s_mul_i32 s70, s3, 2560
    s_add_u32 s70, s70, {OST}
    v_mul_u32_u24 v24, 80, v5
    v_add_u32 v24, s70, v24
    v_lshl_add_u32 v24, v6, 3, v24
    ''')
    MX = 28
    vm.wait_for(a, lambda t: t == ('KV',))
    a(f'''
    v_mov_b32 v8, {CNT_LDS + 8}
    v_mov_b32 v9, 1
    s_mov_b64 exec, 1
    ds_add_u32 v8, v9
    s_mov_b64 exec, -1
    ''')
    a.label('L_kvsync')
    a(f'''
    ds_read_b32 v9, v8
    s_waitcnt lgkmcnt(0)
    v_readfirstlane_b32 s70, v9
    s_cmp_lt_u32 s70, 4
    s_cbranch_scc1 L_kvsync
    ''')
    kreads(0)
    def unit_core(hh, exact):
        Q0 = QR[hh]; Q1 = Q0 + 4
        def s1(dst, kb, c): return f'v_mfma_f32_32x32x16_bf16 v[{dst}:{dst+15}], v[{KF+8*kb}:{KF+8*kb+3}], v[{Q0}:{Q0+3}], {c}'
        def s2(dst, kb): return f'v_mfma_f32_32x32x16_bf16 v[{dst}:{dst+15}], v[{KF+8*kb+4}:{KF+8*kb+7}], v[{Q1}:{Q1+3}], v[{dst}:{dst+15}]'
        def smfma(dst, kb, c): a(s1(dst, kb, c)); a(s2(dst, kb))
        def max_list(S, first):
            return [(f'v_max_f32 v{MX}, v{S}, v{S+1}' if (first and i == 0) else f'v_max3_f32 v{MX}, v{MX}, v{S+2*i}, v{S+2*i+1}') for i in range(8)]
        def interleave(valu, inserts):
            for i, x in enumerate(valu):
                for y in inserts.get(i, []): a(y)
                a(x)
            for y in inserts.get(len(valu), []): a(y)
        bufof = {1: SB[2], 2: SB[1]}
        rot = [SB[0], SB[2], SB[1]]
        for kb in range(3, 8): bufof[kb] = rot[(kb - 3) % 3]
        va = 22 + hh
        def vread_list(kb, VF):
            return [f'ds_read_b64_tr_b16 v[{VF+4*aa+2*u}:{VF+4*aa+2*u+1}], v{va} offset:{kb*256 + aa*128 + u*64}' for aa in range(2) for u in range(2)]
        CN = f'v[{NEGM}:{NEGM+15}]'
        def pv1(VF, Pd, aa, c): return f'v_mfma_f32_32x32x16_bf16 v[{O}:{O+15}], v[{VF+4*aa}:{VF+4*aa+3}], v[{Pd+4*aa}:{Pd+4*aa+3}], {c}'
        OC = f'v[{O}:{O+15}]'
        def exp_list(S, Pd):
            out = []
            for i in range(0, 8, 2):
                out += [f'v_exp_f32 v{S+2*i}, v{S+2*i}', f'v_exp_f32 v{S+2*i+1}, v{S+2*i+1}', f'v_exp_f32 v{S+2*i+2}, v{S+2*i+2}', f'v_exp_f32 v{S+2*i+3}, v{S+2*i+3}',
                        f'v_cvt_pk_bf16_f32 v{Pd+i}, v{S+2*i}, v{S+2*i+1}', f'v_cvt_pk_bf16_f32 v{Pd+i+1}, v{S+2*i+2}, v{S+2*i+3}']
            return out
        def negm_from_mx():
            a(f"""
            v_mov_b32 v29, v{MX}
            v_mov_b32 v30, v{MX}
            v_permlane32_swap_b32 v29, v30
            v_max_f32 v{MX}, v29, v30
            v_sub_f32 v{MX}, 0, v{MX}
            """)
            for r in range(16): a(f'v_mov_b32 v{NEGM+r}, v{MX}')
        smfma(SB[0], 0, '0'); smfma(SB[1], 8, '0')
        for x in vread_list(0, VFB[0]) + vread_list(8, VFB[1]): a(x)
        if exact:
            smfma(SB[2], 1, '0')
            for r in range(16):
                a(f'v_cndmask_b32 v{SB[0]+r}, v{SB[0]+r}, v{SB[1]+r}, s[{MS[r]}:{MS[r]+1}]')
            interleave(max_list(SB[0], True), {0: [s1(SB[1], 2, '0')], 4: [s2(SB[1], 2)]})
            for kb in range(1, 8):
                ins = {}
                if kb + 2 <= 7: ins = {0: [s1(bufof[kb+2], kb+2, '0')], 4: [s2(bufof[kb+2], kb+2)]}
                interleave(max_list(bufof[kb], False), ins)
            negm_from_mx()
            smfma(SB[0], 0, CN); smfma(SB[1], 8, CN); smfma(SB[2], 1, CN)
            for r in range(16):
                a(f'v_cndmask_b32 v{SB[0]+r}, v{SB[0]+r}, v{SB[1]+r}, s[{MS[r]}:{MS[r]+1}]')
        else:
            for r in range(16):
                a(f'v_cndmask_b32 v{SB[0]+r}, v{SB[0]+r}, v{SB[1]+r}, s[{MS[r]}:{MS[r]+1}]')
            for x in max_list(SB[0], True): a(x)
            negm_from_mx()
            smfma(SB[2], 1, CN)
            for r in range(16): a(f'v_add_f32 v{SB[0]+r}, v{SB[0]+r}, v{MX}')
        interleave(exp_list(SB[0], PB[0]), {2: [s1(SB[1], 2, CN)], 10: [s2(SB[1], 2)]})
        for i in range(8):
            a(f'v_and_b32 v{PB[1]+i}, v{PB[0]+i}, v{M8+i}')
            a(f'v_xor_b32 v{PB[0]+i}, v{PB[0]+i}, v{PB[1]+i}')
        PX = 240
        Pof = {1: PX}
        for kb in range(2, 8): Pof[kb] = PB[kb % 2]
        a('s_waitcnt lgkmcnt(0)')
        interleave(exp_list(bufof[1], Pof[1]), {0: [pv1(VFB[0], PB[0], 0, '0')], 5: [pv1(VFB[0], PB[0], 1, OC)], 10: [pv1(VFB[1], PB[1], 0, OC)], 15: [pv1(VFB[1], PB[1], 1, OC)],
                    18: vread_list(1, VFB[0]), 20: [s1(bufof[3], 3, CN)], 24: [s2(bufof[3], 3)]})
        for kb in range(2, 8):
            prevV = VFB[kb % 2]; curV = VFB[(kb + 1) % 2]
            ins = {0: vread_list(kb, curV), 3: ['s_waitcnt lgkmcnt(4)', pv1(prevV, Pof[kb-1], 0, OC)], 9: [pv1(prevV, Pof[kb-1], 1, OC)]}
            if kb + 2 <= 7:
                ins[15] = [s1(bufof[kb+2], kb+2, CN)]; ins[21] = [s2(bufof[kb+2], kb+2)]
            interleave(exp_list(bufof[kb], Pof[kb]), ins)
        lastV = VFB[0]
        a('s_waitcnt lgkmcnt(0)')
        a(pv1(lastV, Pof[7], 0, OC)); a(pv1(lastV, Pof[7], 1, OC))
        a(f"""
        v_mov_b32 v29, v{O+8}
        v_mov_b32 v30, v{O+8}
        v_permlane32_swap_b32 v29, v30
        """)
    C.fallbacks = []
    for hh in (range(2) if 'noatt' not in EXP else []):
        vm.wait_for(a, lambda t: t == ('Q', hh))
        a('s_waitcnt lgkmcnt(0)')
        FAST = 'exactmax' not in EXP
        unit_core(hh, exact=not FAST)
        if FAST:
            a(f"""
            v_mov_b32 v29, 0x71800000
            v_cmp_nlt_f32 vcc, v30, v29
            s_cmp_lg_u64 vcc, 0
            s_cbranch_scc1 L_fb{hh}
            """)
            a.label(f'L_fbret{hh}')
            a('s_nop 1')
            C.fallbacks.append((hh, unit_core))
        if hh == 0: kreads(1)
        a('v_rcp_f32 v30, v30')
        if hh == 0: vm.wait_for(a, lambda t: t == ('G',))
        a('v_mul_f32 v30, v30, v13')
        for i in range(3):
            for r in range(4): a(f'v_mul_f32 v{O+4*i+r}, v{O+4*i+r}, v30')
            a(f'v_cvt_pk_bf16_f32 v{O+4*i}, v{O+4*i}, v{O+4*i+1}')
            a(f'v_cvt_pk_bf16_f32 v{O+4*i+1}, v{O+4*i+2}, v{O+4*i+3}')
        a(f'ds_write_b64 v24, v[{O}:{O+1}] offset:{40*hh}')
        a(f'ds_write_b64 v24, v[{O+4}:{O+5}] offset:{40*hh+16}')
        a(f"""
        s_mov_b64 exec, 0xffffffff
        ds_write_b64 v24, v[{O+8}:{O+9}] offset:{40*hh+32}
        s_mov_b64 exec, -1
        """)
        if 'astage' not in EXP and 'epi' not in EXP: rt(f'att{hh}', 8)
    a(f'''
    s_waitcnt lgkmcnt(0)
    s_lshl_b32 s70, s93, 3
    s_lshl_b32 s64, s3, 1
    s_add_u32 s70, s70, s64
    s_mul_i32 s70, s70, {80*256}
    s_mul_i32 s64, s94, 1280
    s_add_u32 s70, s70, s64
    s_add_u32 s70, s70, {O_OFF}
    s_mul_i32 s64, s3, 2560
    s_add_u32 s64, s64, {OST}
    ''')
    for i in range(3):
        a(f'''
        v_add_u32 v2, {64*i}, v1
        v_and_b32 v3, 15, v2
        v_lshrrev_b32 v4, 4, v2
        v_cmp_le_u32 vcc, 5, v4
        v_cndmask_b32 v5, 0, 1, vcc
        v_mul_u32_u24 v6, 5, v5
        v_sub_u32 v6, v4, v6
        v_lshl_add_u32 v9, v5, 4, v3
        v_mul_u32_u24 v9, 80, v9
        v_lshl_add_u32 v9, v6, 4, v9
        v_add_u32 v9, s64, v9
        ds_read_b128 v[{32+4*i}:{35+4*i}], v9
        v_mul_u32_u24 v{10+i}, 20480, v5
        v_lshl_add_u32 v6, v6, 4, v3
        v_lshl_add_u32 v{10+i}, v6, 4, v{10+i}
        ''')
    a(f'''
    v_cmp_le_u32 vcc, 32, v1
    v_mov_b32 v9, 0x7fffff00
    v_cndmask_b32 v12, v12, v9, vcc
    ''')
    for i in range(3):
        a(f's_waitcnt lgkmcnt({2-i})')
        a(f'buffer_store_dwordx4 v[{32+4*i}:{35+4*i}], v{10+i}, {rsrc(S_WS)}, s70 offen sc1')
    a('s_waitcnt vmcnt(0)')
    count_signal(a, 0, 3, 3, 'O')
    if 'astage' not in EXP and 'epi' not in EXP: rt('attdone', 8)

def gemm2(a, C):
    rt = C.rt
    vm = VM()
    D = 3; R = 5
    DW = 4
    W_ = 's87'
    ACCG = 160; ACT = 64; WFG = [32, 48]
    def acc(mt, nt): return ACCG + (mt * 4 + nt) * 4
    def act(step, i): return ACT + (step % (D + 1)) * 24 + 4 * i
    a(f'''
    s_sub_u32 s87, s3, 4
    s_and_b32 s62, s2, 7
    s_lshr_b32 s63, s2, 3
    s_mul_i32 s64, s63, 52
    s_lshr_b32 s64, s64, 8
    s_mul_i32 s65, s64, 5
    s_sub_u32 s65, s63, s65
    s_and_b32 s61, s62, 1
    s_mul_i32 s61, s61, 5
    s_add_u32 s61, s61, s65
    s_lshr_b32 s62, s62, 1
    s_mul_i32 s60, s62, 6
    s_cmp_eq_u32 s62, 3
    s_cselect_b32 s65, 17, s60
    s_mov_b32 s60, s65
    s_cmp_ge_u32 s62, 2
    s_cselect_b32 s65, 5, 6
    s_cmp_ge_u32 s64, s65
    s_cselect_b32 s86, 1, 0
    s_add_u32 s60, s60, s64
    s_cmp_eq_u32 s86, {G2SEL}
    s_cbranch_scc1 L_g2_active
    s_waitcnt vmcnt(0)
    ''')
    count_signal(a, 4, 7, 2, 'B2')
    a('s_branch L_END')
    a.label('L_g2_active')
    a(f'''
    v_and_b32 v2, 15, v1
    v_lshrrev_b32 v3, 4, v1
    v_lshlrev_b32 v4, 4, v1
    v_lshrrev_b32 v5, 3, v1
    v_and_b32 v6, 7, v1
    v_lshlrev_b32 v7, 1, v3
    v_xor_b32 v6, v6, v7
    v_lshlrev_b32 v6, 4, v6
    ''')
    for b in range(4):
        a(f'''
        v_add_u32 v7, {8*b}, v5
        v_mul_u32_u24 v{10+b}, 1280, v7
        v_add_u32 v{10+b}, v{10+b}, v6
        ''')
    a(f'''
    s_mul_i32 s65, {W_}, {R*4096}
    s_mul_i32 s69, {W_}, {12*40960}
    s_lshl_b32 s64, s61, 7
    s_add_u32 s69, s69, s64
    s_mul_i32 s70, {W_}, {5*40960}
    s_add_u32 s70, s70, s64
    ''')
    NS = 17
    def W_list(step):
        slot = step % R
        out = []
        for b in range(4):
            def f(b=b):
                a(f's_add_u32 m0, s65, {slot*4096 + b*1024}')
                if step < 12: a(f'buffer_load_dwordx4 v{10+b}, {rsrc(S_W2)}, s69 offen lds')
                else: a(f'buffer_load_dwordx4 v{14+b}, {rsrc(S_WO)}, s70 offen lds')
                vm.issue(('W', step))
                if b == 3: a('s_add_u32 s69, s69, 40960' if step < 12 else 's_add_u32 s70, s70, 40960')
            out.append(f)
        return out
    def A_list(step):
        out = []
        if step < 12:
            for aa in range(3):
                for u in range(2):
                    def f(aa=aa, u=u):
                        r0 = act(step, 2*aa + u)
                        a(f'buffer_load_dwordx4 v[{r0}:{r0+3}], v4, {rsrc(S_WS)}, s{66+aa} offen offset:{1024*u} {LD}'); vm.issue(('A', step))
                        if u == 1: a(f's_add_u32 s{66+aa}, s{66+aa}, 2048')
                    out.append(f)
        else:
            for mt in range(6):
                def f(mt=mt):
                    r0 = act(step, mt)
                    a(f'buffer_load_dwordx4 v[{r0}:{r0+3}], v{18+mt}, {rsrc(S_WS)}, s71 offen {LD}'); vm.issue(('A', step))
                    if mt == 5: a('s_add_u32 s71, s71, 1024')
                out.append(f)
        return out
    a('s_waitcnt vmcnt(0)')
    count_signal(a, 4, 7, 2, 'B3', 7)
    for st in range(DW):
        for f in W_list(st): f()
    for b in range(4):
        a(f'''
        v_add_u32 v7, {8*b}, v5
        v_bfe_u32 v8, v7, 2, 2
        v_lshlrev_b32 v8, 3, v8
        v_lshrrev_b32 v9, 4, v7
        v_lshl_add_u32 v8, v9, 2, v8
        v_and_b32 v9, 3, v7
        v_add_u32 v8, v8, v9
        v_mul_u32_u24 v{14+b}, 1280, v8
        v_add_u32 v{14+b}, v{14+b}, v6
        ''')
    a(f'''
    s_mul_i32 s66, s60, 288
    s_mul_i32 s64, {W_}, 24
    s_add_u32 s66, s66, s64
    s_lshl_b32 s66, s66, 10
    s_add_u32 s66, s66, {H_OFF}
    s_add_u32 s67, s66, 98304
    s_add_u32 s68, s67, 98304
    s_cmp_eq_u32 s60, 21
    s_cselect_b32 s67, {OOB:#x}, s67
    s_cselect_b32 s68, {OOB:#x}, s68
    s_cselect_b32 s73, 1, 0
    s_mul_i32 s71, s60, {6*80*256}
    s_mul_i32 s64, {W_}, {5*1024}
    s_add_u32 s71, s71, s64
    s_add_u32 s71, s71, {O_OFF}
    s_mul_i32 s72, s60, 96
    s_lshr_b32 s72, s72, 7
    s_min_u32 s72, s72, 14
    s_lshl_b32 s72, s72, 4
    v_bfe_u32 v5, v1, 2, 2
    v_and_b32 v6, 3, v1
    v_lshl_add_u32 v7, v3, 2, v5
    v_bfe_u32 v8, v7, 1, 2
    v_lshlrev_b32 v7, 7, v7
    v_lshl_add_u32 v7, v6, 3, v7
    v_add_u32 v7, s65, v7
    ''')
    for mt in range(6): a(f'v_add_u32 v{18+mt}, {20480*mt}, v4')
    a('s_cmp_eq_u32 s73, 0\ns_cbranch_scc1 L_rbok')
    for mt in range(2, 6): a(f'v_mov_b32 v{18+mt}, 0x7fffff00')
    a.label('L_rbok')
    for nt in range(4):
        a(f'''
        v_xor_b32 v9, {nt}, v8
        v_lshl_add_u32 v{24+nt}, v9, 5, v7
        ''')
    for i in range(96): a(f'v_mov_b32 v{ACCG+i}, 0')
    poll_bcast(a, 4, 's72', 32, 2, 'H', 5, 6, CNT_LDS + 16)
    (rt('hflag', 5) if ('astage' not in EXP and 'epi' not in EXP) else None)
    for st in range(D):
        for f in A_list(st): f()
    a(f'''
    v_lshlrev_b32 v5, 2, v2
    s_mul_i32 s64, s60, 384
    s_add_u32 s64, s64, {G_OFF}
    ''')
    GR = [28, 29, 30, 31, 8, 9]
    for mt in range(6):
        if mt == 2: a(f's_cmp_eq_u32 s73, 0\ns_cselect_b32 s64, s64, {OOB:#x}')
        a(f'buffer_load_dword v{GR[mt]}, v5, {rsrc(S_WS)}, s64 offen offset:{64*mt} {LD}'); vm.issue(('G',))
    def tr_list(step):
        W = WFG[step % 2]; slot = step % R
        return [f'ds_read_b64_tr_b16 v[{W+4*nt+2*u}:{W+4*nt+2*u+1}], v{24+nt} offset:{slot*4096 + u*2048}' for nt in range(4) for u in range(2)]
    for x in tr_list(0): a(x)
    def step_body(st, pend, nxt_tr):
        trs = tr_list(st + 1) if nxt_tr else []
        if st < 12:
            for aa in range(3):
                x0 = act(st, 2*aa); x1 = act(st, 2*aa + 1)
                a(f'v_swap_b32 v{x0+2}, v{x1}')
                a(f'v_swap_b32 v{x0+3}, v{x1+1}')
        W = WFG[st % 2]
        a('s_waitcnt lgkmcnt(0)')
        i = 0
        for nt in range(4):
            for mt in range(6):
                x = act(st, mt)
                a(f'v_mfma_f32_16x16x32_bf16 v[{acc(mt,nt)}:{acc(mt,nt)+3}], v[{W+4*nt}:{W+4*nt+3}], v[{x}:{x+3}], v[{acc(mt,nt)}:{acc(mt,nt)+3}]')
                if i % 2 == 1 and pend: pend.pop(0)()
                if i % 3 == 0 and trs: a(trs.pop(0))
                i += 1
        while trs: a(trs.pop(0))
        while pend: pend.pop(0)()
    for st in range(12):
        pend = []
        if st + D < 12: pend += A_list(st + D)
        if st + DW < NS: pend += W_list(st + DW)
        vm.wait_for(a, lambda t: t == ('A', st) or t == ('W', st + 1))
        step_body(st, pend, True)
    for f in W_list(16): f()
    for mt in range(6): a(f'v_sub_f32 v{GR[mt]}, 1.0, v{GR[mt]}')
    for mt in range(6):
        for nt in range(4):
            for r in range(4): a(f'v_mul_f32 v{acc(mt,nt)+r}, v{acc(mt,nt)+r}, v{GR[mt]}')
    rt('hdone', 5)
    poll_bcast(a, 4, 's72', 32, 3, 'O', 5, 6, CNT_LDS + 20)
    (rt('oflag', 5) if ('astage' not in EXP and 'epi' not in EXP) else None)
    for st in range(12, 16):
        for f in A_list(st): f()
    for st in range(12, 17):
        pend = []
        if st == 12: pend_after = A_list(16)
        nxt = st + 1 < NS
        vm.wait_for(a, lambda t: t == ('A', st) or (nxt and t == ('W', st + 1)))
        step_body(st, [], nxt)
        if st == 12:
            for f in pend_after: f()
    (rt('g2loop', 5) if ('astage' not in EXP and 'epi' not in EXP) else None)
    a('s_barrier')
    for w in range(4):
        a(f's_cmp_eq_u32 {W_}, {w}')
        a(f's_cbranch_scc0 L_red{w}')
        for nt in range(4):
            if nt == w: continue
            si = w if w < nt else w - 1
            for mt in range(6):
                off = ((nt * 3 + si) * 6 + mt) * 1024
                if off < 65536: a(f'ds_write_b128 v4, v[{acc(mt,nt)}:{acc(mt,nt)+3}] offset:{off}')
                else:
                    a(f'v_add_u32 v6, 65536, v4')
                    a(f'ds_write_b128 v6, v[{acc(mt,nt)}:{acc(mt,nt)+3}] offset:{off-65536}')
        a('s_waitcnt lgkmcnt(0)')
        a('s_barrier')
        k = 0; order = []
        a(f'v_add_u32 v6, {w*3*6*1024}, v4')
        for si in range(3):
            for mt in range(6):
                a(f'ds_read_b128 v[{64+4*k}:{67+4*k}], v6 offset:{(si*6+mt)*1024}'); order.append(mt); k += 1
        for k, mt in enumerate(order):
            a(f's_waitcnt lgkmcnt({min(17-k, 15)})')
            for r in range(4):
                src_r = acc(mt, w) + r if k < 6 else 136 + 4*mt + r
                a(f'v_add_f32 v{136+4*mt+r}, v{src_r}, v{64+4*k+r}')
        a('s_branch L_redone')
        a('s_nop 7')
        a.label(f'L_red{w}')
    a.label('L_redone')
    a(f'''
    s_mul_i32 s64, s60, {96*1280}
    s_lshl_b32 s71, s61, 7
    s_add_u32 s64, s64, s71
    s_lshl_b32 s71, {W_}, 5
    s_add_u32 s64, s64, s71
    v_mul_u32_u24 v5, 1280, v2
    v_lshl_add_u32 v5, v3, 3, v5
    ''')
    for mt in range(6):
        A = 136 + 4*mt
        a(f'v_cvt_pk_bf16_f32 v{A}, v{A}, v{A+1}')
        a(f'v_cvt_pk_bf16_f32 v{A+1}, v{A+2}, v{A+3}')
        a(f'v_add_u32 v6, {20480*mt}, v5')
        a(f'buffer_store_dwordx2 v[{A}:{A+1}], v6, {rsrc(S_OUT)}, s64 offen')
    rt('end', 5)

def build(stamps=False):
    a = Asm(); a.name = 'k'
    C = Ctx()
    C.rt = RT(a, stamps, RT_LDS); C.rt.stride = 44
    prologue(a, C)
    C.rt('start', 8)
    gemm1(a, C)
    a(f'''
    s_cmp_ge_u32 s3, 4
    s_cbranch_scc1 L_G2ROLE
    s_setprio {0 if 'prio' in EXP else 2}
    ''')
    n0 = C.rt.n
    attention(a, C)
    if stamps: C.rt.dump()
    a('s_branch L_END')
    for hh, fn in getattr(C, 'fallbacks', []):
        a.label(f'L_fb{hh}')
        a('s_nop 7\ns_nop 7\ns_waitcnt lgkmcnt(0)')
        fn(hh, True)
        a('s_nop 7\ns_nop 7')
        a(f's_branch L_fbret{hh}')
    a.label('L_G2ROLE')
    if 'prioG' in EXP: a('s_setprio 2')
    names_att = list(C.rt.names)
    C.rt.n = n0; C.rt.names = C.rt.names[:n0]
    gemm2(a, C)
    if stamps:
        C.rt.dump()
        print(','.join(names_att), ','.join(C.rt.names), file=sys.stderr)
    a.label('L_END')
    a('s_endpgm')
    a.finalize()
    out = [f'''; fused persistent kernel v4
; @launch grid=(256,1,1) block=(512,1,1) lds={LDS_TOTAL}
.amdgcn_target "amdgcn-amd-amdhsa--gfx950"
.text
''']
    out.append(kernel_wrap(KN + '_kernel', a.text(), 256))
    out.append('.section .rodata,"a"\n.p2align 6\n')
    out.append(kd(KN + '_kernel', 256, 102))
    return ''.join(out)

if __name__ == '__main__':
    open(sys.argv[1], 'w').write(build(len(sys.argv) > 2))
```

```python
import sys, math, os
from asm import *
from gen1 import VM, f32bits, KN, kd, kernel_wrap
from stamp import RT
EXP = os.environ.get('EXP', '')

S_X, S_WQKV, S_W1, S_W2, S_WO, S_GW, S_OUT, S_WS, S_DBG = 8, 12, 16, 20, 24, 28, 32, 36, 88
QKV_OFF = 0; H_OFF = 0x800000; O_OFF = 0xE40000; G_OFF = 0x1100000; WS_SIZE = 0x1600000
LD = '' if 'ldplain' in EXP else 'sc1'
CQ = math.log2(math.e) / math.sqrt(20.0)
LDS_TOTAL = 163840
SLOT = 32768
KV_BASE = 98304
ARR = 3104
OST = 81920
CNT_LDS = 163456
RT_LDS = 163488
OOB = 0x7ff00000
SIGK = int(os.environ.get('SIGK', '6'))
C4S = int(os.environ.get('C4S', '16640'))
B0_BASE = 131072
G2SEL = 7 if 'nog2' in EXP else 0
FLAG_OFF = 0x1200000
EPOCH_OFF = 0x11F0000
TOK_LDS = CNT_LDS + 24

def rsrc(d): return f's[{d}:{d+3}]'
class Ctx: pass
class LG:
    def __init__(self): self.ops = []
    def issue(self, tag): self.ops.append(tag)
    def wait_for(self, a, pred):
        last = -1
        for i, t in enumerate(self.ops):
            if pred(t): last = i
        assert last >= 0
        n = len(self.ops) - 1 - last
        a('s_waitcnt lgkmcnt(%d)' % min(n, 15))

def flag_store(a, val, v0=8):
    a(f'''
    v_mov_b32 v{v0+1}, {TOK_LDS}
    ds_read_b32 v{v0}, v{v0+1}
    s_lshl_b32 s64, s92, 7
    s_add_u32 s64, s64, {FLAG_OFF + (val-1)*256*128}
    v_mov_b32 v{v0+1}, s64
    s_waitcnt lgkmcnt(0)
    s_mov_b64 exec, 1
    buffer_store_dword v{v0}, v{v0+1}, {rsrc(S_WS)}, 0 offen sc1
    s_mov_b64 exec, -1
    ''')

def count_signal(a, cnt_off, last, val, tag, v0=8):
    a(f'''
    v_mov_b32 v{v0}, {CNT_LDS + cnt_off}
    v_mov_b32 v{v0+1}, 1
    s_mov_b64 exec, 1
    ds_add_rtn_u32 v{v0+2}, v{v0}, v{v0+1}
    s_waitcnt lgkmcnt(0)
    v_readfirstlane_b32 s64, v{v0+2}
    s_mov_b64 exec, -1
    s_cmp_lg_u32 s64, {last}
    s_cbranch_scc1 L_cs{tag}
    ''')
    flag_store(a, val, v0)
    a.label(f'L_cs{tag}')

def poll(a, first_sreg, ndw, minval, tag, va, vb):
    lab = f'L_poll{tag}'; done = f'L_polld{tag}'
    add = (0x80 - minval) * 0x01010101
    a(f'''
    v_lshlrev_b32 v{va}, 2, v1
    v_cmp_gt_u32 vcc, {ndw}, v1
    v_cndmask_b32 v{va}, 0, v{va}, vcc
    v_add_u32 v{va}, {first_sreg}, v{va}
    ''')
    a.label(lab)
    a(f'''
    buffer_load_dword v{vb}, v{va}, {rsrc(S_DBG)}, 0 offen sc1
    s_waitcnt vmcnt(0)
    v_add_u32 v{vb}, {add:#x}, v{vb}
    v_and_b32 v{vb}, 0x80808080, v{vb}
    v_cmp_ne_u32 vcc, 0x80808080, v{vb}
    s_cmp_eq_u64 vcc, 0
    s_cbranch_scc1 {done}
    s_sleep 1
    s_branch {lab}
    ''')
    a.label(done)

def poll_bcast(a, leader, first_idx_sreg, nflags, phase, tag, va, vb, lds_word, sleep=2):
    a(f'''
    s_cmp_lg_u32 s3, {leader}
    s_cbranch_scc1 L_pbw{tag}
    v_mov_b32 v{va}, {TOK_LDS}
    ds_read_b32 v{vb}, v{va}
    v_cmp_gt_u32 vcc, {nflags}, v1
    v_cndmask_b32 v{va}, 0, v1, vcc
    v_add_u32 v{va}, {first_idx_sreg}, v{va}
    v_lshlrev_b32 v{va}, 7, v{va}
    v_add_u32 v{va}, {FLAG_OFF + (phase-1)*256*128}, v{va}
    s_waitcnt lgkmcnt(0)
    v_readfirstlane_b32 s85, v{vb}
    ''')
    lab = f'L_poll{tag}'; done = f'L_polld{tag}'
    a.label(lab)
    a(f'''
    buffer_load_dword v{vb}, v{va}, {rsrc(S_WS)}, 0 offen sc1
    s_waitcnt vmcnt(0)
    v_cmp_ne_u32 vcc, s85, v{vb}
    s_cmp_eq_u64 vcc, 0
    s_cbranch_scc1 {done}
    s_sleep {sleep}
    s_branch {lab}
    ''')
    a.label(done)
    a(f'''
    v_mov_b32 v{va}, {lds_word}
    v_mov_b32 v{vb}, 1
    ds_write_b32 v{va}, v{vb}
    s_waitcnt lgkmcnt(0)
    s_branch L_pbd{tag}
    ''')
    a.label(f'L_pbw{tag}')
    a(f'v_mov_b32 v{va}, {lds_word}')
    a.label(f'L_pbs{tag}')
    a(f'''
    ds_read_b32 v{vb}, v{va}
    s_waitcnt lgkmcnt(0)
    v_readfirstlane_b32 s64, v{vb}
    s_cmp_lg_u32 s64, 0
    s_cbranch_scc1 L_pbd{tag}
    s_sleep 1
    s_branch L_pbs{tag}
    ''')
    a.label(f'L_pbd{tag}')

XF = 96; ACC = 64; WF = 32
def xf(s, t): return XF + (s * 2 + t) * 4
KVS = 40

def prologue(a, C):
    MAPJ = ('s_lshl_b32 s62, s62, 2\n    s_add_u32 s94, s94, s62' if 'mapi' in EXP else 's_lshl_b32 s94, s94, 2\n    s_add_u32 s94, s94, s62')
    a(f'''
    s_cmp_ge_u32 s2, 256
    s_cbranch_scc1 L_END
    s_load_dwordx4 s[40:43], s[0:1], 0
    s_load_dwordx2 s[44:45], s[0:1], 16
    s_load_dwordx4 s[48:51], s[0:1], 32
    s_load_dwordx4 s[52:55], s[0:1], 48
    s_load_dwordx4 s[56:59], s[0:1], 64
    v_and_b32 v1, 63, v0
    v_lshrrev_b32 v2, 6, v0
    s_and_b32 s63, s2, 7
    s_lshr_b32 s64, s2, 3
    v_readfirstlane_b32 s3, v2
    s_lshr_b32 s93, s63, 2
    s_lshl_b32 s93, s93, 3
    s_and_b32 s65, s64, 7
    s_add_u32 s93, s93, s65
    s_lshr_b32 s62, s64, 3
    s_and_b32 s94, s63, 3
    {MAPJ}
    s_lshl_b32 s92, s93, 4
    s_add_u32 s92, s92, s94
    ''')

def srd(a, d, lo, size):
    a(f'''
    s_mov_b32 s{d}, s{lo}
    s_and_b32 s{d+1}, s{lo+1}, 0xffff
    s_mov_b32 s{d+2}, {size}
    s_mov_b32 s{d+3}, 0x00020000
    ''')

def gemm1(a, C):
    rt = C.rt
    vm = VM(); lg = LG()
    def acc(t, nt): return ACC + (t * 4 + nt) * 4
    def wf(ksl, nt): return WF + (ksl * 4 + nt) * 4
    a('''
    v_lshrrev_b32 v6, 3, v1
    v_lshrrev_b32 v7, 4, v1
    v_and_b32 v8, 7, v1
    s_and_b32 s74, s3, 3
    s_lshl_b32 s64, s74, 5
    v_add_u32 v9, s64, v6
    v_mul_u32_u24 v4, 1280, v9
    v_xor_b32 v10, v8, v7
    v_lshl_add_u32 v4, v10, 4, v4
    v_xor_b32 v10, 4, v10
    v_add_u32 v9, 8, v9
    v_mul_u32_u24 v5, 1280, v9
    v_lshl_add_u32 v5, v10, 4, v5
    s_mul_i32 s66, s93, 163840
    s_add_u32 s75, s66, 20480
    s_lshr_b32 s64, s74, 1
    s_lshl_b32 s64, s64, 5
    v_add_u32 v9, s64, v6
    v_and_b32 v10, 2, v6
    v_xor_b32 v10, v8, v10
    s_and_b32 s65, s74, 1
    s_lshl_b32 s65, s65, 7
    v_lshl_add_u32 v13, v10, 4, s65
    v_xor_b32 v10, 4, v10
    v_lshl_add_u32 v14, v10, 4, s65
    v_mul_u32_u24 v2, 3840, v9
    v_add_u32 v2, v2, v13
    v_add_u32 v10, 8, v9
    v_mul_u32_u24 v3, 3840, v10
    v_add_u32 v3, v3, v14
    s_lshl_b32 s67, s94, 8
    s_lshl_b32 s68, s74, 12
    s_lshr_b32 s64, s74, 1
    s_lshl_b32 s69, s64, 13
    s_and_b32 s65, s74, 1
    s_lshl_b32 s65, s65, 12
    s_add_u32 s69, s69, s65
    s_add_u32 s69, s69, 16384
    s_cmp_eq_u32 s94, 15
    s_cselect_b32 s67, 0x7ff00000, s67
    s_cselect_b32 s70, 0, %d
    s_add_u32 s76, s67, %d
    s_waitcnt lgkmcnt(0)
    ''' % (64*3840, 16*3840))
    srd(a, S_X, 40, 2048 * 1280)
    srd(a, S_WQKV, 42, 640 * 3840)
    srd(a, S_WS, 58, WS_SIZE)
    srd(a, S_DBG, 56, 256)
    a(f'''
    s_xor_b32 s64, s3, 4
    s_or_b32 s64, s64, s2
    s_cmp_lg_u32 s64, 0
    s_cbranch_scc1 L_notok
    v_mov_b32 v8, {EPOCH_OFF}
    buffer_load_dword v9, v8, {rsrc(S_WS)}, 0 offen sc1
    s_waitcnt vmcnt(0)
    v_add_u32 v9, 1, v9
    v_mov_b32 v10, v9
    v_mov_b32 v11, 0x5a5a5a5a
    v_mov_b32 v14, 0
    s_mov_b64 exec, 1
    buffer_store_dword v9, v8, {rsrc(S_WS)}, 0 offen sc1
    buffer_store_dwordx2 v[10:11], v14, {rsrc(S_DBG)}, 0 offen sc1
    s_mov_b64 exec, -1
    ''')
    a.label('L_notok')
    def dma_A(sg):
        slot = (sg % 4) * SLOT
        out = []
        for i in range(4):
            def f(i=i):
                a(f's_add_u32 m0, s68, {slot + 1024*i}')
                a(f'buffer_load_dwordx4 v{4+(i&1)}, {rsrc(S_X)}, s{66 if i < 2 else 75} offen lds'); vm.issue(('A', sg))
                if i == 3: a('s_add_u32 s66, s66, 128\ns_add_u32 s75, s75, 128')
            out.append(f)
        for i in range(4):
            def f(i=i):
                a(f's_add_u32 m0, s69, {slot + 1024*i}')
                a(f'buffer_load_dwordx4 v{2+(i&1)}, {rsrc(S_WQKV)}, s{67 if i < 2 else 76} offen lds'); vm.issue(('A', sg))
                if i == 3: a('s_add_u32 s67, s67, s70\ns_add_u32 s76, s76, s70')
            out.append(f)
        return out
    def lo4(fn, tag):
        a(f's_cmp_ge_u32 s3, 4\ns_cbranch_scc1 L_lo{tag}')
        fn()
        a.label(f'L_lo{tag}')
    lo4(lambda: [f() for sg in range(3) for f in dma_A(sg)], 'p')
    pass
    srd(a, S_W1, 48, 640 * 3072)
    if 'gt' in EXP:
        a(f'''
        s_cmp_lt_u32 s3, 4
        s_cbranch_scc1 L_gtdone
        v_lshlrev_b32 v8, 7, v1
        s_cmp_eq_u32 s3, 4
        s_cbranch_scc0 L_gt5
        s_mul_i32 s64, s2, {75*128}
        buffer_load_dword v255, v8, {rsrc(S_WQKV)}, s64 offen
        s_branch L_gtdone
        ''')
        a.label('L_gt5')
        a(f'''
        s_cmp_eq_u32 s3, 5
        s_cbranch_scc0 L_gt6
        s_mul_i32 s64, s2, {60*128}
        buffer_load_dword v255, v8, {rsrc(S_W1)}, s64 offen
        s_branch L_gtdone
        ''')
        a.label('L_gt6')
        a(f'''
        s_cmp_eq_u32 s3, 6
        s_cbranch_scc0 L_gt7
        s_mul_i32 s64, s2, {80*128}
        buffer_load_dword v255, v8, {rsrc(S_X)}, s64 offen
        s_branch L_gtdone
        ''')
        a.label('L_gt7')
        a(f'''
        v_cmp_gt_u32 vcc, 16, v1
        v_mov_b32 v9, 0x7fffff00
        v_cndmask_b32 v9, v9, v8, vcc
        s_mul_i32 s64, s2, {80*128}
        s_add_u32 s64, s64, {64*128}
        buffer_load_dword v255, v9, {rsrc(S_X)}, s64 offen
        s_mul_i32 s64, s2, {75*128}
        s_add_u32 s64, s64, {64*128}
        buffer_load_dword v255, v9, {rsrc(S_WQKV)}, s64 offen
        ''')
        a.label('L_gtdone')
    srd(a, S_GW, 52, 1280)
    srd(a, S_WO, 44, 640 * 1280)
    srd(a, S_W2, 50, 1536 * 1280)
    srd(a, S_OUT, 54, 2048 * 1280)
    if 'tlb' in EXP:
        a(f'''
        s_cmp_lt_u32 s3, 4
        s_cbranch_scc1 L_tlbdone
        v_lshlrev_b32 v8, 16, v1
        v_add_u32 v8, 0x8000, v8
        s_cmp_eq_u32 s3, 4
        s_cbranch_scc0 L_tlb5
        buffer_load_dword v254, v8, {rsrc(S_WQKV)}, 0 offen
        buffer_load_dword v254, v8, {rsrc(S_W1)}, 0 offen
        buffer_load_dword v254, v8, {rsrc(S_X)}, 0 offen
        s_branch L_tlbdone
        ''')
        a.label('L_tlb5')
        a(f'''
        s_cmp_eq_u32 s3, 5
        s_cbranch_scc0 L_tlb6
        buffer_load_dword v254, v8, {rsrc(S_W2)}, 0 offen
        buffer_load_dword v254, v8, {rsrc(S_WO)}, 0 offen
        buffer_load_dword v254, v8, {rsrc(S_OUT)}, 0 offen
        s_branch L_tlbdone
        ''')
        a.label('L_tlb6')
        a(f'''
        s_sub_u32 s64, s3, 6
        s_mul_i32 s64, s64, {3*64*65536}
        buffer_load_dword v254, v8, {rsrc(S_WS)}, s64 offen {LD}
        s_add_u32 s64, s64, {64*65536}
        buffer_load_dword v254, v8, {rsrc(S_WS)}, s64 offen {LD}
        s_add_u32 s64, s64, {64*65536}
        buffer_load_dword v254, v8, {rsrc(S_WS)}, s64 offen {LD}
        ''')
        a.label('L_tlbdone')
    a(f'''
    s_cmp_ge_u32 s3, 6
    s_cbranch_scc1 L_noones
    s_lshl_b32 s64, s3, 9
    v_lshl_add_u32 v8, v1, 3, s64
    v_add_u32 v8, {KV_BASE + 20*ARR}, v8
    v_mov_b32 v10, 0x3f80
    v_mov_b32 v11, 0
    ds_write_b64 v8, v[10:11]
    v_mov_b32 v8, {CNT_LDS}
    v_mov_b32 v10, 0
    ds_write_b64 v8, v[10:11]
    ds_write_b64 v8, v[10:11] offset:8
    ds_write_b64 v8, v[10:11] offset:16
    ''')
    a.label('L_noones')
    for b in range(3):
        a(f'''
        v_add_u32 v8, {64*b}, v1
        v_mul_u32_u24 v9, 171, v8
        v_lshrrev_b32 v9, 10, v9
        v_mul_u32_u24 v10, 6, v9
        v_sub_u32 v10, v8, v10
        v_bfe_u32 v14, v9, 2, 2
        v_lshlrev_b32 v14, 3, v14
        v_lshrrev_b32 v15, 4, v9
        v_lshl_add_u32 v14, v15, 2, v14
        v_and_b32 v15, 3, v9
        v_add_u32 v14, v14, v15
        v_mul_u32_u24 v{11+b}, 3072, v14
        v_lshl_add_u32 v{11+b}, v10, 4, v{11+b}
        ''')
    a('''
    s_lshr_b32 s64, s3, 1
    s_mul_i32 s71, s64, 98304
    s_mul_i32 s65, s94, 192
    s_add_u32 s71, s71, s65
    s_and_b32 s65, s3, 1
    s_mul_i32 s65, s65, 96
    s_add_u32 s71, s71, s65
    s_mul_i32 s72, s3, 3072
    ''')
    def dma_B(j):
        slot = B0_BASE if j == 0 else ((9 + j) % 4) * SLOT
        out = []
        for b in range(3):
            def f(b=b):
                a(f's_add_u32 m0, s72, {slot + 1024*b}')
                a(f'buffer_load_dwordx4 v{11+b}, {rsrc(S_W1)}, s71 offen lds'); vm.issue(('B', j))
                if b == 2: a(f's_add_u32 s71, s71, {128*3072}')
            out.append(f)
        return out
    a('''
    v_and_b32 v6, 15, v1
    v_lshrrev_b32 v8, 1, v6
    v_xor_b32 v9, v7, v8
    s_and_b32 s64, s3, 3
    s_lshl_b32 s64, s64, 12
    v_lshlrev_b32 v10, 7, v6
    v_add_u32 v10, s64, v10
    v_lshl_add_u32 v16, v9, 4, v10
    v_xor_b32 v9, 4, v9
    v_lshl_add_u32 v17, v9, 4, v10
    v_add_u32 v18, 0x10000, v16
    v_add_u32 v19, 0x10000, v17
    v_bfe_u32 v8, v1, 2, 2
    v_and_b32 v9, 3, v1
    v_lshrrev_b32 v10, 1, v8
    v_and_b32 v14, 1, v7
    v_lshl_or_b32 v10, v14, 1, v10
    v_lshl_add_u32 v14, v7, 3, v8
    v_lshlrev_b32 v14, 7, v14
    v_lshl_add_u32 v14, v9, 3, v14
    s_lshr_b32 s64, s3, 2
    s_lshl_b32 s65, s64, 12
    s_add_u32 s65, s65, 16384
    v_add_u32 v14, s65, v14
    ''')
    for nt in range(4):
        a(f'''
        v_xor_b32 v15, {nt}, v10
        v_lshl_add_u32 v{20+nt}, v15, 5, v14
        v_add_u32 v{24+nt}, 0x10000, v{20+nt}
        ''')
    a('''
    v_lshl_add_u32 v14, v7, 2, v8
    v_mul_u32_u24 v28, 96, v14
    v_lshl_add_u32 v28, v9, 3, v28
    s_mul_i32 s65, s64, 3072
    v_add_u32 v28, s65, v28
    v_add_u32 v29, 0x10000, v28
    v_add_u32 v31, 0x20000, v28
    v_lshlrev_b32 v30, 4, v1
    ''')
    for i in range(32): a(f'v_mov_b32 v{ACC+i}, 0')
    def xaddr(sg, ksl):
        sl = sg % 4
        return (16 + ksl + (2 if sl >= 2 else 0), (sl % 2) * SLOT)
    def waddr(sg, nt):
        sl = sg % 4
        return (20 + nt + (4 if sl >= 2 else 0), (sl % 2) * SLOT)
    def xread_list(sg):
        out = []
        for ksl in range(2):
            va, off = xaddr(sg, ksl)
            for t in range(2):
                r0 = xf(2*sg + ksl, t)
                out.append((f'ds_read_b128 v[{r0}:{r0+3}], v{va} offset:{off + 2048*t}', ('x', sg, ksl)))
        return out
    def wread(sg, ksl, nt):
        va, off = waddr(sg, nt)
        W = wf(ksl, nt)
        for u in range(2):
            a(f'ds_read_b64_tr_b16 v[{W+2*u}:{W+2*u+1}], v{va} offset:{off + ksl*8192 + 512*u}'); lg.issue(('w', sg, ksl, nt))
    nB = [0]
    def tok_early(tag):
        a(f'''
        s_cmp_lg_u32 s3, 0
        s_cbranch_scc1 L_te{tag}
        v_mov_b32 v14, 0
        buffer_load_dwordx2 v[14:15], v14, {rsrc(S_DBG)}, 0 offen sc1
        ''')
        a.label(f'L_te{tag}')
    def next_dmas(sg):
        if sg + 3 < 10: return dma_A(sg + 3)
        r = dma_B(nB[0]); nB[0] += 1
        return r
    TOUCH = 'notouch' not in EXP
    if TOUCH:
        a('''
        s_lshr_b32 s64, s2, 3
        s_bfe_u32 s65, s2, 0x10002
        s_lshl_b32 s65, s65, 10
        s_lshl_b32 s73, s64, 5
        s_add_u32 s65, s65, s73
        v_and_b32 v8, 31, v1
        v_add_u32 v9, s65, v8
        v_mul_u32_u24 v9, 1280, v9
        v_lshrrev_b32 v10, 5, v1
        v_lshl_add_u32 v9, v10, 7, v9
        v_lshlrev_b32 v10, 6, v7
        v_bfe_u32 v14, v1, 3, 1
        v_add_u32 v10, v10, v14
        s_lshl_b32 s73, s64, 1
        v_add_u32 v10, s73, v10
        v_mul_u32_u24 v10, 3840, v10
        v_and_b32 v14, 7, v1
        v_lshl_add_u32 v10, v14, 7, v10
        s_and_b32 s65, s2, 3
        s_lshl_b32 s73, s65, 10
        v_add_u32 v10, s73, v10
        s_and_b32 s73, s3, 1
        s_lshl_b32 s73, s73, 6
        v_add_u32 v8, s73, v1
        v_mul_u32_u24 v14, 0x2aab, v8
        v_lshrrev_b32 v14, 16, v14
        v_mul_u32_u24 v15, 6, v14
        v_sub_u32 v15, v8, v15
        s_mul_i32 s64, s64, 20
        v_add_u32 v14, s64, v14
        v_mul_u32_u24 v14, 3072, v14
        v_lshl_add_u32 v14, v15, 7, v14
        s_mul_i32 s65, s65, 768
        v_add_u32 v14, s65, v14
        v_cmp_gt_u32 vcc, 120, v8
        v_mov_b32 v15, 0x7fffff00
        v_cndmask_b32 v8, v15, v14, vcc
        ''')
    def only_wave(wv, txt, tag):
        a(f's_cmp_lg_u32 s3, {wv}')
        a(f's_cbranch_scc1 L_t{tag}')
        a(txt)
        a.label(f'L_t{tag}')
    def touches(sg, pfx):
        if not TOUCH: return
        TD = 255
        if sg == 0:
            only_wave(0, f'buffer_load_dword v{TD}, v9, {rsrc(S_X)}, 0 offen offset:{128*5}', pfx + 'x0')
            only_wave(2, f's_mov_b32 s73, {64*3840*5}\nbuffer_load_dword v{TD}, v10, {rsrc(S_WQKV)}, s73 offen', pfx + 'w0')
            only_wave(3, f's_mov_b32 s73, {64*3840*7}\nbuffer_load_dword v{TD}, v10, {rsrc(S_WQKV)}, s73 offen', pfx + 'w1')
        if sg == 1:
            only_wave(1, f'buffer_load_dword v{TD}, v9, {rsrc(S_X)}, 0 offen offset:{128*9}', pfx + 'x1')
            only_wave(4, f's_mov_b32 s73, {64*3840*9}\nbuffer_load_dword v{TD}, v10, {rsrc(S_WQKV)}, s73 offen', pfx + 'w2')
        if sg == 2:
            for wv in (5, 6, 7, 0):
                only_wave(wv, f'buffer_load_dword v{TD}, v8, {rsrc(S_W1)}, 0 offen', pfx + f'b{wv}')
    a('''
    s_cmp_eq_u32 s94, 15
    s_cbranch_scc1 L_GWG
    ''')
    vm_save = list(vm.ops)
    def all_touches(pfx, part):
        if not TOUCH: return
        TD = 255
        if part == 0:
            if 'tw' in EXP: only_wave(6, f's_mov_b32 s73, {64*3840*4}\nbuffer_load_dword v{TD}, v10, {rsrc(S_WQKV)}, s73 offen', pfx + 'w0')
            if 'tx' in EXP: only_wave(7, f'buffer_load_dword v{TD}, v9, {rsrc(S_X)}, 0 offen offset:{128*4}', pfx + 'x0')
        if part == 1:
            if 'tx' in EXP: only_wave(7, f'buffer_load_dword v{TD}, v9, {rsrc(S_X)}, 0 offen offset:{128*6}', pfx + 'x1')
        if part == 2:
            if 'tw' in EXP: only_wave(6, f's_mov_b32 s73, {64*3840*8}\nbuffer_load_dword v{TD}, v10, {rsrc(S_WQKV)}, s73 offen', pfx + 'w1')
            if 'tx' in EXP: only_wave(7, f'buffer_load_dword v{TD}, v9, {rsrc(S_X)}, 0 offen offset:{128*8}', pfx + 'x2')
        if part == 3:
            only_wave(4, f'buffer_load_dword v{TD}, v8, {rsrc(S_W1)}, 0 offen', pfx + 'b0')
            only_wave(5, f'buffer_load_dword v{TD}, v8, {rsrc(S_W1)}, 0 offen', pfx + 'b1')
    def phaseA(role):
        nB[0] = 0
        lg.ops = []
        if role == 'lo':
            vm.ops = list(vm_save)
            vm.wait_for(a, lambda t: t == ('A', 0))
        else:
            vm.ops = []
        a('s_barrier')
        for txt, tag in xread_list(0): a(txt); lg.issue(tag)
        for ksl in range(2):
            for nt in range(4): wread(0, ksl, nt)
        for sg in range(10):
            if role == 'lo' and sg + 1 < 10: vm.wait_for(a, lambda t: t == ('A', sg + 1))
            if sg == 9: a('s_waitcnt lgkmcnt(0)')
            a('s_barrier')
            if sg == 7 and role == 'lo': tok_early('n')
            if role == 'hi' and sg < 4: all_touches('h', sg)
            if role == 'hi' and sg == 4 and 'gt2' in EXP:
                a('v_lshlrev_b32 v9, 7, v1')
                only_wave(4, f's_mul_i32 s73, s2, {60*128}\nbuffer_load_dword v255, v9, {rsrc(S_W2)}, s73 offen', 'g2a')
                only_wave(5, f's_mul_i32 s73, s2, {25*128}\nbuffer_load_dword v255, v9, {rsrc(S_WO)}, s73 offen', 'g2b')
            if sg + 3 < 10: dm = dma_A(sg + 3) if role == 'lo' else []
            else:
                dm = dma_B(sg - 6)
            if sg == 1: dm = dm + dma_B(0)
            more = sg + 1 < 10
            xr = xread_list(sg + 1) if more else []
            pi = 0
            for ksl in range(2):
                for nt in range(4):
                    if pi < len(xr): a(xr[pi][0]); lg.issue(xr[pi][1])
                    lg.wait_for(a, lambda t: t in (('w', sg, ksl, nt), ('x', sg, ksl)))
                    if dm and (len(dm) > 4 or pi % 2 == 0): dm.pop(0)()
                    if len(dm) > 8 - pi: dm.pop(0)()
                    for t in range(2):
                        x = xf(2*sg + ksl, t)
                        a(f'v_mfma_f32_16x16x32_bf16 v[{acc(t,nt)}:{acc(t,nt)+3}], v[{wf(ksl,nt)}:{wf(ksl,nt)+3}], v[{x}:{x+3}], v[{acc(t,nt)}:{acc(t,nt)+3}]')
                    if more: wread(sg + 1, ksl, nt)
                    pi += 1
            while dm: dm.pop(0)()
            if ('astage' in EXP and sg in (0, 1, 2, 4, 6, 8)) or ('epi' in EXP and sg in (6, 8)):
                rt(f'A{sg}', 14 if sg < 5 else 8)
    a('s_cmp_ge_u32 s3, 4\ns_cbranch_scc1 L_AHI')
    n_rt0 = rt.n; names0 = list(rt.names)
    phaseA('lo')
    vm_lo = list(vm.ops)
    a('s_branch L_AEPI')
    a.label('L_AHI')
    rt.n = n_rt0; rt.names = list(names0)
    phaseA('hi')
    a.label('L_AEPI')
    if 'epi' in EXP: rt('A9', 8)
    vm.ops = [('B', 0)] * 3 + [('B', 1)] * 3 + [('B', 2)] * 3 + [('B', 3)] * 3
    a(f'''
    v_mul_u32_u24 v8, {C4S}, v7
    v_and_b32 v9, 14, v6
    v_lshl_add_u32 v8, v9, 3, v8
    v_and_b32 v9, 1, v6
    v_lshl_add_u32 v8, v9, 7, v8
    v_cmp_eq_u32 s[74:75], 0, v9
    s_lshl_b32 s64, s94, 5
    s_lshr_b32 s65, s3, 2
    s_lshl_b32 s65, s65, 4
    s_add_u32 s64, s64, s65
    s_mul_i32 s64, s64, {C4S}
    s_lshl_b32 s65, s93, 7
    s_and_b32 s73, s3, 3
    s_lshl_b32 s73, s73, 5
    s_add_u32 s65, s65, s73
    s_lshl_b32 s65, s65, 3
    s_add_u32 s64, s64, s65
    s_add_u32 s64, s64, {QKV_OFF}
    s_cmp_lt_u32 s94, 5
    s_cselect_b32 s65, {f32bits(CQ):#x}, 1.0
    ''')
    EV = 's[74:75]'
    for nt in range(4):
        A0 = acc(0, nt); A1 = acc(1, nt); T = WF + 8*nt
        for A in (A0, A1):
            for r in range(4): a(f'v_mul_f32 v{A+r}, s65, v{A+r}')
            a(f'v_cvt_pk_bf16_f32 v{A}, v{A}, v{A+1}')
            a(f'v_cvt_pk_bf16_f32 v{A+1}, v{A+2}, v{A+3}')
        a(f'v_cndmask_b32 v{T}, v{A0}, v{A1}, {EV}')
        a(f'v_cndmask_b32 v{T+1}, v{A0+1}, v{A1+1}, {EV}')
        a(f'v_mov_b32_dpp v{T+2}, v{T} quad_perm:[1,0,3,2] row_mask:0xf bank_mask:0xf')
        a(f'v_mov_b32_dpp v{T+3}, v{T+1} quad_perm:[1,0,3,2] row_mask:0xf bank_mask:0xf')
        a(f'v_cndmask_b32 v{T+4}, v{T+2}, v{A0}, {EV}')
        a(f'v_cndmask_b32 v{T+5}, v{T+3}, v{A0+1}, {EV}')
        a(f'v_cndmask_b32 v{T+6}, v{A1}, v{T+2}, {EV}')
        a(f'v_cndmask_b32 v{T+7}, v{A1+1}, v{T+3}, {EV}')
        a(f'buffer_store_dwordx4 v[{T+4}:{T+7}], v8, {rsrc(S_WS)}, s64 offen sc1'); vm.issue(('ST',))
        a(f's_add_u32 s64, s64, {4*C4S}')
    if 'epi' in EXP: rt('stored', 8)
    vm.wait_for(a, lambda t: t == ('B', 0))
    if 'epi' in EXP: rt('b0w', 8)
    vmA_tail = list(vm.ops)
    a('s_branch L_AJOIN')
    a.label('L_GWG')
    vm.ops = list(vm_save); nB[0] = 0
    a('v_lshlrev_b32 v20, 4, v7')
    GSAFE = True
    GACC = ACC
    def gw_wait(s):
        idx = max(i for i, t in enumerate(vm.ops) if t == ('GW', s))
        n = sum(1 for t in vm.ops[idx+1:] if t[0] != 'A')
        a(f's_waitcnt vmcnt({n})')
    for s in range(8):
        a(f'buffer_load_dwordx4 v[{WF+4*s}:{WF+4*s+3}], v20, {rsrc(S_GW)}, 0 offen offset:{64*s}'); vm.issue(('GW', s))
    for sg in range(10):
        vm.wait_for(a, lambda t: t == ('A', sg))
        a('s_barrier')
        if sg == 7: tok_early('g')
        if sg + 3 < 10: lo4(lambda: [f() for f in dma_A(sg + 3)], f'g{sg}')
        else:
            for f in dma_B(sg - 6): f()
        if sg == 1:
            for f in dma_B(0): f()
        for txt, tag in xread_list(sg): a(txt)
        for ksl in range(2):
            s = 2*sg + ksl
            gw_wait(s)
            a(f's_waitcnt lgkmcnt({2 if ksl == 0 else 0})')
            for t in range(2):
                x = xf(s, t)
                a(f'v_mfma_f32_16x16x32_bf16 v[{GACC+4*t}:{GACC+4*t+3}], v[{WF+4*(s%8)}:{WF+4*(s%8)+3}], v[{x}:{x+3}], v[{GACC+4*t}:{GACC+4*t+3}]')
            if s + 8 < 20:
                a(f'buffer_load_dwordx4 v[{WF+4*(s%8)}:{WF+4*(s%8)+3}], v20, {rsrc(S_GW)}, 0 offen offset:{64*(s+8)}'); vm.issue(('GW', s + 8))
    a('s_nop 0')
    for t in range(2):
        z = GACC + 4*t
        a(f'''
        v_mul_f32 v{z}, {f32bits(-math.log2(math.e)):#x}, v{z}
        v_exp_f32 v{z}, v{z}
        v_add_f32 v{z}, 1.0, v{z}
        v_rcp_f32 v{z}, v{z}
        ''')
    a(f'''
    v_lshlrev_b32 v8, 2, v6
    v_cmp_gt_u32 vcc, 16, v1
    v_mov_b32 v9, 0x7fffff00
    v_cndmask_b32 v8, v9, v8, vcc
    s_lshl_b32 s64, s93, 7
    s_and_b32 s65, s3, 3
    s_lshl_b32 s65, s65, 5
    s_add_u32 s64, s64, s65
    s_lshl_b32 s64, s64, 2
    s_add_u32 s64, s64, {G_OFF}
    buffer_store_dword v{GACC}, v8, {rsrc(S_WS)}, s64 offen sc1
    buffer_store_dword v{GACC+4}, v8, {rsrc(S_WS)}, s64 offen offset:64 sc1
    s_waitcnt vmcnt(2)
    ''')
    a.label('L_AJOIN')
    a(f'''
    s_cmp_lg_u32 s3, 0
    s_cbranch_scc1 L_tokdone
    v_readfirstlane_b32 s64, v15
    s_cmp_lg_u32 s64, 0
    s_cbranch_scc1 L_tokok
    ''')
    a.label('L_tokpoll')
    a(f'''
    v_mov_b32 v14, 0
    buffer_load_dwordx2 v[14:15], v14, {rsrc(S_DBG)}, 0 offen sc1
    s_waitcnt vmcnt(0)
    v_readfirstlane_b32 s64, v15
    s_cmp_lg_u32 s64, 0
    s_cbranch_scc0 L_tokpoll
    ''')
    a.label('L_tokok')
    a(f'''
    v_mov_b32 v8, {TOK_LDS}
    ds_write_b32 v8, v14
    ''')
    a.label('L_tokdone')
    if 'epi' in EXP: rt('tok', 8)
    a('s_waitcnt lgkmcnt(0)')
    a('s_barrier')
    rt('Ajoin', 8)
    vm.ops = list(vmA_tail)
    def accB(t, nt): return ACC + (t * 3 + nt) * 4
    def wfB(k, nt): return WF + ((k % 2) * 3 + nt) * 4
    def wreadB(k, nt):
        j = k // 4; ksl = k % 4
        if j == 0:
            va = 31; off = ksl * 6144 + nt * 32
        else:
            sl = (9 + j) % 4
            va = 28 + (1 if sl >= 2 else 0)
            off = (sl % 2) * SLOT + ksl * 6144 + nt * 32
        W = wfB(k, nt)
        for u in range(2):
            a(f'ds_read_b64_tr_b16 v[{W+2*u}:{W+2*u+1}], v{va} offset:{off + 1536*u}'); lg.issue(('wb', k, nt))
    lg.ops = []
    for k in range(2):
        for nt in range(3): wreadB(k, nt)
    for i in range(24): a(f'v_mov_b32 v{ACC+i}, 0')
    pend = dma_B(4)
    G2T = 'nog2t' not in EXP
    if G2T:
        a('''
        s_and_b32 s62, s2, 7
        s_lshr_b32 s63, s2, 3
        s_mul_i32 s60, s63, 52
        s_lshr_b32 s60, s60, 8
        s_mul_i32 s61, s60, 5
        s_sub_u32 s61, s63, s61
        s_and_b32 s62, s62, 1
        s_mul_i32 s62, s62, 5
        s_add_u32 s61, s61, s62
        s_lshl_b32 s61, s61, 7
        s_mul_i32 s60, s60, 1280
        s_add_u32 s61, s61, s60
        v_mul_u32_u24 v9, 7680, v1
        ''')
    def g2touch(i):
        wv = 4 + (i & 3)
        srd_ = S_W2 if i < 4 else S_WO
        base = (i if i < 4 else i - 4) * 64 * 7680
        a(f'''
        s_cmp_lg_u32 s3, {wv}
        s_cbranch_scc1 L_g2t{i}
        s_add_u32 s62, s61, {base}
        buffer_load_dword v10, v9, {rsrc(srd_)}, s62 offen
        ''')
        a.label(f'L_g2t{i}')
    for k in range(20):
        if G2T and k in (3, 4, 5, 7, 8, 9): g2touch({3: 0, 4: 1, 5: 2, 7: 3, 8: 4, 9: 5}[k])
        if k == 2:
            vm.wait_for(a, lambda t: t == ('B', 1))
            a('s_barrier')
        if k == SIGK:
            vm.wait_for(a, lambda t: t == ('ST',))
            a('s_barrier')
            a('s_cmp_lg_u32 s3, 0\ns_cbranch_scc1 L_sigA')
            flag_store(a, 1)
            a.label('L_sigA')
        if k == 14:
            vm.wait_for(a, lambda t: t == ('B', 4))
            a('s_barrier')
        for nt in range(3):
            lg.wait_for(a, lambda t: t == ('wb', k, nt))
            if pend and nt != 1: pend.pop(0)()
            for t in range(2):
                x = xf(k, t)
                a(f'v_mfma_f32_16x16x32_bf16 v[{accB(t,nt)}:{accB(t,nt)+3}], v[{wfB(k,nt)}:{wfB(k,nt)+3}], v[{x}:{x+3}], v[{accB(t,nt)}:{accB(t,nt)+3}]')
            if k + 2 < 20: wreadB(k + 2, nt)
    assert not pend
    if 'cyc' not in EXP and 'astage' not in EXP and 'epi' not in EXP: rt('Bdone', 8)
    a(f'''
    s_lshl_b32 s64, s93, 2
    s_and_b32 s65, s3, 3
    s_add_u32 s64, s64, s65
    s_mul_i32 s64, s64, 96
    s_mul_i32 s65, s94, 6
    s_add_u32 s64, s64, s65
    s_lshr_b32 s65, s3, 2
    s_mul_i32 s65, s65, 3
    s_add_u32 s64, s64, s65
    s_lshl_b32 s64, s64, 10
    s_add_u32 s64, s64, {H_OFF}
    ''')
    for nt in range(3):
        D0 = WF + 4*nt
        for t in range(2):
            A = accB(t, nt)
            for r in range(4): a(f'v_max_f32 v{A+r}, 0, v{A+r}')
            a(f'v_cvt_pk_bf16_f32 v{D0+2*t}, v{A}, v{A+1}')
            a(f'v_cvt_pk_bf16_f32 v{D0+2*t+1}, v{A+2}, v{A+3}')
        a(f'buffer_store_dwordx4 v[{D0}:{D0+3}], v30, {rsrc(S_WS)}, s64 offen offset:{1024*nt} sc1'); vm.issue(('STH',))
    a('s_barrier')
    if 'astage' not in EXP and 'epi' not in EXP: rt('Bbar', 8)

def attention(a, C):
    rt = C.rt
    vm = VM()
    KF = 32; QR = [104, 232]
    a('''
    s_sub_i32 s64, s93, 2
    s_max_i32 s64, s64, 0
    s_lshl_b32 s64, s64, 4
    v_lshlrev_b32 v30, 4, v1
    ''')
    a(f'''
    s_lshr_b32 s65, s3, 1
    s_mul_i32 s65, s65, 160
    s_add_u32 s65, s65, 160
    s_mul_i32 s70, s94, 10
    s_add_u32 s65, s65, s70
    s_and_b32 s70, s3, 1
    s_mul_i32 s70, s70, 5
    s_add_u32 s65, s65, s70
    s_mul_i32 s65, s65, {C4S}
    s_mul_i32 s66, s3, {5*ARR}
    s_add_u32 s66, s66, {KV_BASE}
    ''')
    for b in range(3):
        a(f'''
        s_add_u32 s70, s93, {b}
        s_sub_i32 s70, s70, 2
        s_lshl_b32 s71, s70, 10
        s_add_u32 s71, s71, s65
        s_cmp_lt_i32 s70, 0
        s_cselect_b32 s{67+b}, {OOB:#x}, s71
        s_cselect_b32 s{60+b}, 0, {C4S}
        ''')
    a('s_mov_b32 s59, s64')
    a('s_waitcnt vmcnt(0)')
    count_signal(a, 4, 7, 2, 'B1')
    poll_bcast(a, 0, 's59', 48, 1, 'KV', 8, 9, CNT_LDS + 12)
    if 'astage' not in EXP and 'epi' not in EXP: rt('qkvflag', 8)
    for c in range(5):
        for b in range(3):
            a(f's_add_u32 m0, s66, {c*ARR + b*1024}')
            a(f'buffer_load_dwordx4 v30, {rsrc(S_WS)}, s{67+b} offen {LD} lds'); vm.issue(('KV',))
            a(f's_add_u32 s{67+b}, s{67+b}, s{60+b}')

    SB = [112, 128, 144]; NEGM = 160; PB = [176, 184]; VFB = [192, 200]; O = 208; M8 = 224
    a(f'''
    s_lshl_b32 s74, s93, 7
    s_lshl_b32 s70, s3, 5
    s_add_u32 s74, s74, s70
    v_and_b32 v5, 31, v1
    v_lshrrev_b32 v6, 5, v1
    v_add_u32 v7, s74, v5
    v_lshlrev_b32 v8, 3, v7
    v_mul_u32_u24 v9, {2*C4S}, v6
    v_add_u32 v9, v9, v8
    v_add_u32 v10, {4*C4S}, v8
    v_cmp_eq_u32 vcc, 0, v6
    v_mov_b32 v11, 0x7fffff00
    v_cndmask_b32 v10, v11, v10, vcc
    s_mul_i32 s70, s94, {10*C4S}
    s_add_u32 s70, s70, {QKV_OFF}
    ''')
    for hh in range(2):
        Q0 = QR[hh]
        a(f'''
        s_add_u32 s71, s70, {C4S}
        buffer_load_dwordx2 v[{Q0}:{Q0+1}], v9, {rsrc(S_WS)}, s70 offen {LD}
        buffer_load_dwordx2 v[{Q0+2}:{Q0+3}], v9, {rsrc(S_WS)}, s71 offen {LD}
        buffer_load_dwordx2 v[{Q0+4}:{Q0+5}], v10, {rsrc(S_WS)}, s70 offen {LD}
        s_add_u32 s70, s70, {5*C4S}
        ''')
        for _ in range(3): vm.issue(('Q', hh))
    a(f'''
    v_lshlrev_b32 v12, 2, v7
    s_mov_b32 s70, {G_OFF}
    buffer_load_dword v13, v12, {rsrc(S_WS)}, s70 offen {LD}
    v_mov_b32 v11, 0x3f80
    '''); vm.issue(('G',))
    for hh in range(2):
        a(f'v_cndmask_b32 v{QR[hh]+6}, 0, v11, vcc')
        a(f'v_mov_b32 v{QR[hh]+7}, 0')
    a(f'''
    s_lshl_b32 s70, s3, 8
    s_add_u32 s70, s70, {KV_BASE}
    v_lshlrev_b32 v19, 3, v5
    v_add_u32 v19, s70, v19
    v_add_u32 v20, {4*ARR}, v19
    v_mul_u32_u24 v21, {2*ARR}, v6
    v_add_u32 v19, v19, v21
    ''')
    def kreads(hh):
        ko = hh * 5 * ARR
        for kb in (0, 8, 1, 2, 3, 4, 5, 6, 7):
            a(f'ds_read_b64 v[{KF+8*kb}:{KF+8*kb+1}], v19 offset:{ko + kb*256}')
            a(f'ds_read_b64 v[{KF+8*kb+2}:{KF+8*kb+3}], v19 offset:{ko + kb*256 + ARR}')
            a(f'ds_read_b64 v[{KF+8*kb+4}:{KF+8*kb+5}], v20 offset:{ko + kb*256}')
    MS_PLACEHOLDER = None
    MS = [40 + 2*i for i in range(10)] + [76 + 2*i for i in range(6)]
    a('''
    v_lshlrev_b32 v14, 2, v6
    v_sub_u32 v14, v5, v14
    ''')
    for r in range(16):
        c = 8*(r >> 2) + (r & 3)
        a(f'v_cmp_le_i32 s[{MS[r]}:{MS[r]+1}], {c}, v14')
    a('v_mov_b32 v15, 0xffff')
    a('v_mov_b32 v16, 0xffff0000')
    for i in range(8):
        a(f'''
        v_cndmask_b32 v17, 0, v15, s[{MS[2*i]}:{MS[2*i]+1}]
        v_cndmask_b32 v18, 0, v16, s[{MS[2*i+1]}:{MS[2*i+1]+1}]
        v_or_b32 v{M8+i}, v17, v18
        ''')
    a('''
    s_lshr_b32 s75, s74, 5
    s_sub_i32 s75, 8, s75
    s_max_i32 s75, s75, 0
    ''')
    for kb in range(9):
        a(f'''
        s_cmp_gt_u32 s75, {kb}
        s_cselect_b32 s70, 0xf149, 0
        v_mov_b32 v{KF+8*kb+6}, s70
        v_mov_b32 v{KF+8*kb+7}, 0
        ''')
    a(f'''
    s_lshl_b32 s70, s3, 8
    s_add_u32 s70, s70, {KV_BASE}
    v_bfe_u32 v21, v1, 4, 1
    v_bfe_u32 v22, v1, 2, 2
    v_and_b32 v23, 3, v1
    v_lshl_add_u32 v23, v21, 2, v23
    v_lshl_add_u32 v22, v6, 2, v22
    v_lshlrev_b32 v22, 3, v22
    v_add_u32 v22, s70, v22
    v_cmp_gt_u32 vcc, 5, v23
    v_add_u32 v24, 10, v23
    v_mov_b32 v25, 20
    v_cndmask_b32 v24, v25, v24, vcc
    v_add_u32 v26, 15, v23
    v_cndmask_b32 v26, v25, v26, vcc
    v_mul_u32_u24 v24, {ARR}, v24
    v_mul_u32_u24 v26, {ARR}, v26
    v_add_u32 v23, v22, v26
    v_add_u32 v22, v22, v24
    s_mul_i32 s70, s3, 2560
    s_add_u32 s70, s70, {OST}
    v_mul_u32_u24 v24, 80, v5
    v_add_u32 v24, s70, v24
    v_lshl_add_u32 v24, v6, 3, v24
    ''')
    MX = 28
    vm.wait_for(a, lambda t: t == ('KV',))
    a(f'''
    v_mov_b32 v8, {CNT_LDS + 8}
    v_mov_b32 v9, 1
    s_mov_b64 exec, 1
    ds_add_u32 v8, v9
    s_mov_b64 exec, -1
    ''')
    a.label('L_kvsync')
    a(f'''
    ds_read_b32 v9, v8
    s_waitcnt lgkmcnt(0)
    v_readfirstlane_b32 s70, v9
    s_cmp_lt_u32 s70, 4
    s_cbranch_scc1 L_kvsync
    ''')
    kreads(0)
    def unit_core(hh, exact):
        Q0 = QR[hh]; Q1 = Q0 + 4
        def s1(dst, kb, c): return f'v_mfma_f32_32x32x16_bf16 v[{dst}:{dst+15}], v[{KF+8*kb}:{KF+8*kb+3}], v[{Q0}:{Q0+3}], {c}'
        def s2(dst, kb): return f'v_mfma_f32_32x32x16_bf16 v[{dst}:{dst+15}], v[{KF+8*kb+4}:{KF+8*kb+7}], v[{Q1}:{Q1+3}], v[{dst}:{dst+15}]'
        def smfma(dst, kb, c): a(s1(dst, kb, c)); a(s2(dst, kb))
        def max_list(S, first):
            return [(f'v_max_f32 v{MX}, v{S}, v{S+1}' if (first and i == 0) else f'v_max3_f32 v{MX}, v{MX}, v{S+2*i}, v{S+2*i+1}') for i in range(8)]
        def interleave(valu, inserts):
            for i, x in enumerate(valu):
                for y in inserts.get(i, []): a(y)
                a(x)
            for y in inserts.get(len(valu), []): a(y)
        bufof = {1: SB[2], 2: SB[1]}
        rot = [SB[0], SB[2], SB[1]]
        for kb in range(3, 8): bufof[kb] = rot[(kb - 3) % 3]
        va = 22 + hh
        def vread_list(kb, VF):
            return [f'ds_read_b64_tr_b16 v[{VF+4*aa+2*u}:{VF+4*aa+2*u+1}], v{va} offset:{kb*256 + aa*128 + u*64}' for aa in range(2) for u in range(2)]
        CN = f'v[{NEGM}:{NEGM+15}]'
        def pv1(VF, Pd, aa, c): return f'v_mfma_f32_32x32x16_bf16 v[{O}:{O+15}], v[{VF+4*aa}:{VF+4*aa+3}], v[{Pd+4*aa}:{Pd+4*aa+3}], {c}'
        OC = f'v[{O}:{O+15}]'
        def exp_list(S, Pd):
            out = []
            for i in range(0, 8, 2):
                out += [f'v_exp_f32 v{S+2*i}, v{S+2*i}', f'v_exp_f32 v{S+2*i+1}, v{S+2*i+1}', f'v_exp_f32 v{S+2*i+2}, v{S+2*i+2}', f'v_exp_f32 v{S+2*i+3}, v{S+2*i+3}',
                        f'v_cvt_pk_bf16_f32 v{Pd+i}, v{S+2*i}, v{S+2*i+1}', f'v_cvt_pk_bf16_f32 v{Pd+i+1}, v{S+2*i+2}, v{S+2*i+3}']
            return out
        def negm_from_mx():
            a(f"""
            v_mov_b32 v29, v{MX}
            v_mov_b32 v30, v{MX}
            v_permlane32_swap_b32 v29, v30
            v_max_f32 v{MX}, v29, v30
            v_sub_f32 v{MX}, 0, v{MX}
            """)
            for r in range(16): a(f'v_mov_b32 v{NEGM+r}, v{MX}')
        smfma(SB[0], 0, '0'); smfma(SB[1], 8, '0')
        for x in vread_list(0, VFB[0]) + vread_list(8, VFB[1]): a(x)
        if exact:
            smfma(SB[2], 1, '0')
            for r in range(16):
                a(f'v_cndmask_b32 v{SB[0]+r}, v{SB[0]+r}, v{SB[1]+r}, s[{MS[r]}:{MS[r]+1}]')
            interleave(max_list(SB[0], True), {0: [s1(SB[1], 2, '0')], 4: [s2(SB[1], 2)]})
            for kb in range(1, 8):
                ins = {}
                if kb + 2 <= 7: ins = {0: [s1(bufof[kb+2], kb+2, '0')], 4: [s2(bufof[kb+2], kb+2)]}
                interleave(max_list(bufof[kb], False), ins)
            negm_from_mx()
            smfma(SB[0], 0, CN); smfma(SB[1], 8, CN); smfma(SB[2], 1, CN)
            for r in range(16):
                a(f'v_cndmask_b32 v{SB[0]+r}, v{SB[0]+r}, v{SB[1]+r}, s[{MS[r]}:{MS[r]+1}]')
        else:
            for r in range(16):
                a(f'v_cndmask_b32 v{SB[0]+r}, v{SB[0]+r}, v{SB[1]+r}, s[{MS[r]}:{MS[r]+1}]')
            for x in max_list(SB[0], True): a(x)
            negm_from_mx()
            smfma(SB[2], 1, CN)
            for r in range(16): a(f'v_add_f32 v{SB[0]+r}, v{SB[0]+r}, v{MX}')
        interleave(exp_list(SB[0], PB[0]), {2: [s1(SB[1], 2, CN)], 10: [s2(SB[1], 2)]})
        for i in range(8):
            a(f'v_and_b32 v{PB[1]+i}, v{PB[0]+i}, v{M8+i}')
            a(f'v_xor_b32 v{PB[0]+i}, v{PB[0]+i}, v{PB[1]+i}')
        PX = 240
        Pof = {1: PX}
        for kb in range(2, 8): Pof[kb] = PB[kb % 2]
        a('s_waitcnt lgkmcnt(0)')
        interleave(exp_list(bufof[1], Pof[1]), {0: [pv1(VFB[0], PB[0], 0, '0')], 5: [pv1(VFB[0], PB[0], 1, OC)], 10: [pv1(VFB[1], PB[1], 0, OC)], 15: [pv1(VFB[1], PB[1], 1, OC)],
                    18: vread_list(1, VFB[0]), 20: [s1(bufof[3], 3, CN)], 24: [s2(bufof[3], 3)]})
        for kb in range(2, 8):
            prevV = VFB[kb % 2]; curV = VFB[(kb + 1) % 2]
            ins = {0: vread_list(kb, curV), 3: ['s_waitcnt lgkmcnt(4)', pv1(prevV, Pof[kb-1], 0, OC)], 9: [pv1(prevV, Pof[kb-1], 1, OC)]}
            if kb + 2 <= 7:
                ins[15] = [s1(bufof[kb+2], kb+2, CN)]; ins[21] = [s2(bufof[kb+2], kb+2)]
            interleave(exp_list(bufof[kb], Pof[kb]), ins)
        lastV = VFB[0]
        a('s_waitcnt lgkmcnt(0)')
        a(pv1(lastV, Pof[7], 0, OC)); a(pv1(lastV, Pof[7], 1, OC))
        a(f"""
        v_mov_b32 v29, v{O+8}
        v_mov_b32 v30, v{O+8}
        v_permlane32_swap_b32 v29, v30
        """)
    C.fallbacks = []
    for hh in (range(2) if 'noatt' not in EXP else []):
        vm.wait_for(a, lambda t: t == ('Q', hh))
        a('s_waitcnt lgkmcnt(0)')
        FAST = 'exactmax' not in EXP
        unit_core(hh, exact=not FAST)
        if FAST:
            a(f"""
            v_mov_b32 v29, 0x71800000
            v_cmp_nlt_f32 vcc, v30, v29
            s_cmp_lg_u64 vcc, 0
            s_cbranch_scc1 L_fb{hh}
            """)
            a.label(f'L_fbret{hh}')
            a('s_nop 1')
            C.fallbacks.append((hh, unit_core))
        if hh == 0: kreads(1)
        a('v_rcp_f32 v30, v30')
        if hh == 0: vm.wait_for(a, lambda t: t == ('G',))
        a('v_mul_f32 v30, v30, v13')
        for i in range(3):
            for r in range(4): a(f'v_mul_f32 v{O+4*i+r}, v{O+4*i+r}, v30')
            a(f'v_cvt_pk_bf16_f32 v{O+4*i}, v{O+4*i}, v{O+4*i+1}')
            a(f'v_cvt_pk_bf16_f32 v{O+4*i+1}, v{O+4*i+2}, v{O+4*i+3}')
        a(f'ds_write_b64 v24, v[{O}:{O+1}] offset:{40*hh}')
        a(f'ds_write_b64 v24, v[{O+4}:{O+5}] offset:{40*hh+16}')
        a(f"""
        s_mov_b64 exec, 0xffffffff
        ds_write_b64 v24, v[{O+8}:{O+9}] offset:{40*hh+32}
        s_mov_b64 exec, -1
        """)
        if 'astage' not in EXP and 'epi' not in EXP: rt(f'att{hh}', 8)
    a(f'''
    s_waitcnt lgkmcnt(0)
    s_lshl_b32 s70, s93, 3
    s_lshl_b32 s64, s3, 1
    s_add_u32 s70, s70, s64
    s_mul_i32 s70, s70, {80*256}
    s_mul_i32 s64, s94, 1280
    s_add_u32 s70, s70, s64
    s_add_u32 s70, s70, {O_OFF}
    s_mul_i32 s64, s3, 2560
    s_add_u32 s64, s64, {OST}
    ''')
    for i in range(3):
        a(f'''
        v_add_u32 v2, {64*i}, v1
        v_and_b32 v3, 15, v2
        v_lshrrev_b32 v4, 4, v2
        v_cmp_le_u32 vcc, 5, v4
        v_cndmask_b32 v5, 0, 1, vcc
        v_mul_u32_u24 v6, 5, v5
        v_sub_u32 v6, v4, v6
        v_lshl_add_u32 v9, v5, 4, v3
        v_mul_u32_u24 v9, 80, v9
        v_lshl_add_u32 v9, v6, 4, v9
        v_add_u32 v9, s64, v9
        ds_read_b128 v[{32+4*i}:{35+4*i}], v9
        v_mul_u32_u24 v{10+i}, 20480, v5
        v_lshl_add_u32 v6, v6, 4, v3
        v_lshl_add_u32 v{10+i}, v6, 4, v{10+i}
        ''')
    a(f'''
    v_cmp_le_u32 vcc, 32, v1
    v_mov_b32 v9, 0x7fffff00
    v_cndmask_b32 v12, v12, v9, vcc
    ''')
    for i in range(3):
        a(f's_waitcnt lgkmcnt({2-i})')
        a(f'buffer_store_dwordx4 v[{32+4*i}:{35+4*i}], v{10+i}, {rsrc(S_WS)}, s70 offen sc1')
    a('s_waitcnt vmcnt(0)')
    count_signal(a, 0, 3, 3, 'O')
    if 'astage' not in EXP and 'epi' not in EXP: rt('attdone', 8)

def gemm2(a, C):
    rt = C.rt
    vm = VM()
    D = 3; R = 5
    DW = 4
    W_ = 's87'
    ACCG = 160; ACT = 64; WFG = [32, 48]
    def acc(mt, nt): return ACCG + (mt * 4 + nt) * 4
    def act(step, i): return ACT + (step % (D + 1)) * 24 + 4 * i
    a(f'''
    s_sub_u32 s87, s3, 4
    s_and_b32 s62, s2, 7
    s_lshr_b32 s63, s2, 3
    s_mul_i32 s64, s63, 52
    s_lshr_b32 s64, s64, 8
    s_mul_i32 s65, s64, 5
    s_sub_u32 s65, s63, s65
    s_and_b32 s61, s62, 1
    s_mul_i32 s61, s61, 5
    s_add_u32 s61, s61, s65
    s_lshr_b32 s62, s62, 1
    s_mul_i32 s60, s62, 6
    s_cmp_eq_u32 s62, 3
    s_cselect_b32 s65, 17, s60
    s_mov_b32 s60, s65
    s_cmp_ge_u32 s62, 2
    s_cselect_b32 s65, 5, 6
    s_cmp_ge_u32 s64, s65
    s_cselect_b32 s86, 1, 0
    s_add_u32 s60, s60, s64
    s_cmp_eq_u32 s86, {G2SEL}
    s_cbranch_scc1 L_g2_active
    s_waitcnt vmcnt(0)
    ''')
    count_signal(a, 4, 7, 2, 'B2')
    a('s_branch L_END')
    a.label('L_g2_active')
    a(f'''
    v_and_b32 v2, 15, v1
    v_lshrrev_b32 v3, 4, v1
    v_lshlrev_b32 v4, 4, v1
    v_lshrrev_b32 v5, 3, v1
    v_and_b32 v6, 7, v1
    v_lshlrev_b32 v7, 1, v3
    v_xor_b32 v6, v6, v7
    v_lshlrev_b32 v6, 4, v6
    ''')
    for b in range(4):
        a(f'''
        v_add_u32 v7, {8*b}, v5
        v_mul_u32_u24 v{10+b}, 1280, v7
        v_add_u32 v{10+b}, v{10+b}, v6
        ''')
    a(f'''
    s_mul_i32 s65, {W_}, {R*4096}
    s_mul_i32 s69, {W_}, {12*40960}
    s_lshl_b32 s64, s61, 7
    s_add_u32 s69, s69, s64
    s_mul_i32 s70, {W_}, {5*40960}
    s_add_u32 s70, s70, s64
    ''')
    NS = 17
    def W_list(step):
        slot = step % R
        out = []
        for b in range(4):
            def f(b=b):
                a(f's_add_u32 m0, s65, {slot*4096 + b*1024}')
                if step < 12: a(f'buffer_load_dwordx4 v{10+b}, {rsrc(S_W2)}, s69 offen lds')
                else: a(f'buffer_load_dwordx4 v{14+b}, {rsrc(S_WO)}, s70 offen lds')
                vm.issue(('W', step))
                if b == 3: a('s_add_u32 s69, s69, 40960' if step < 12 else 's_add_u32 s70, s70, 40960')
            out.append(f)
        return out
    def A_list(step):
        out = []
        if step < 12:
            for aa in range(3):
                for u in range(2):
                    def f(aa=aa, u=u):
                        r0 = act(step, 2*aa + u)
                        a(f'buffer_load_dwordx4 v[{r0}:{r0+3}], v4, {rsrc(S_WS)}, s{66+aa} offen offset:{1024*u} {LD}'); vm.issue(('A', step))
                        if u == 1: a(f's_add_u32 s{66+aa}, s{66+aa}, 2048')
                    out.append(f)
        else:
            for mt in range(6):
                def f(mt=mt):
                    r0 = act(step, mt)
                    a(f'buffer_load_dwordx4 v[{r0}:{r0+3}], v{18+mt}, {rsrc(S_WS)}, s71 offen {LD}'); vm.issue(('A', step))
                    if mt == 5: a('s_add_u32 s71, s71, 1024')
                out.append(f)
        return out
    a('s_waitcnt vmcnt(0)')
    count_signal(a, 4, 7, 2, 'B3', 7)
    for st in range(DW):
        for f in W_list(st): f()
    for b in range(4):
        a(f'''
        v_add_u32 v7, {8*b}, v5
        v_bfe_u32 v8, v7, 2, 2
        v_lshlrev_b32 v8, 3, v8
        v_lshrrev_b32 v9, 4, v7
        v_lshl_add_u32 v8, v9, 2, v8
        v_and_b32 v9, 3, v7
        v_add_u32 v8, v8, v9
        v_mul_u32_u24 v{14+b}, 1280, v8
        v_add_u32 v{14+b}, v{14+b}, v6
        ''')
    a(f'''
    s_mul_i32 s66, s60, 288
    s_mul_i32 s64, {W_}, 24
    s_add_u32 s66, s66, s64
    s_lshl_b32 s66, s66, 10
    s_add_u32 s66, s66, {H_OFF}
    s_add_u32 s67, s66, 98304
    s_add_u32 s68, s67, 98304
    s_cmp_eq_u32 s60, 21
    s_cselect_b32 s67, {OOB:#x}, s67
    s_cselect_b32 s68, {OOB:#x}, s68
    s_cselect_b32 s73, 1, 0
    s_mul_i32 s71, s60, {6*80*256}
    s_mul_i32 s64, {W_}, {5*1024}
    s_add_u32 s71, s71, s64
    s_add_u32 s71, s71, {O_OFF}
    s_mul_i32 s72, s60, 96
    s_lshr_b32 s72, s72, 7
    s_min_u32 s72, s72, 14
    s_lshl_b32 s72, s72, 4
    v_bfe_u32 v5, v1, 2, 2
    v_and_b32 v6, 3, v1
    v_lshl_add_u32 v7, v3, 2, v5
    v_bfe_u32 v8, v7, 1, 2
    v_lshlrev_b32 v7, 7, v7
    v_lshl_add_u32 v7, v6, 3, v7
    v_add_u32 v7, s65, v7
    ''')
    for mt in range(6): a(f'v_add_u32 v{18+mt}, {20480*mt}, v4')
    a('s_cmp_eq_u32 s73, 0\ns_cbranch_scc1 L_rbok')
    for mt in range(2, 6): a(f'v_mov_b32 v{18+mt}, 0x7fffff00')
    a.label('L_rbok')
    for nt in range(4):
        a(f'''
        v_xor_b32 v9, {nt}, v8
        v_lshl_add_u32 v{24+nt}, v9, 5, v7
        ''')
    for i in range(96): a(f'v_mov_b32 v{ACCG+i}, 0')
    poll_bcast(a, 4, 's72', 32, 2, 'H', 5, 6, CNT_LDS + 16)
    (rt('hflag', 5) if ('astage' not in EXP and 'epi' not in EXP) else None)
    for st in range(D):
        for f in A_list(st): f()
    a(f'''
    v_lshlrev_b32 v5, 2, v2
    s_mul_i32 s64, s60, 384
    s_add_u32 s64, s64, {G_OFF}
    ''')
    GR = [28, 29, 30, 31, 8, 9]
    for mt in range(6):
        if mt == 2: a(f's_cmp_eq_u32 s73, 0\ns_cselect_b32 s64, s64, {OOB:#x}')
        a(f'buffer_load_dword v{GR[mt]}, v5, {rsrc(S_WS)}, s64 offen offset:{64*mt} {LD}'); vm.issue(('G',))
    def tr_list(step):
        W = WFG[step % 2]; slot = step % R
        return [f'ds_read_b64_tr_b16 v[{W+4*nt+2*u}:{W+4*nt+2*u+1}], v{24+nt} offset:{slot*4096 + u*2048}' for nt in range(4) for u in range(2)]
    for x in tr_list(0): a(x)
    def step_body(st, pend, nxt_tr):
        trs = tr_list(st + 1) if nxt_tr else []
        if st < 12:
            for aa in range(3):
                x0 = act(st, 2*aa); x1 = act(st, 2*aa + 1)
                a(f'v_swap_b32 v{x0+2}, v{x1}')
                a(f'v_swap_b32 v{x0+3}, v{x1+1}')
        W = WFG[st % 2]
        a('s_waitcnt lgkmcnt(0)')
        i = 0
        for nt in range(4):
            for mt in range(6):
                x = act(st, mt)
                a(f'v_mfma_f32_16x16x32_bf16 v[{acc(mt,nt)}:{acc(mt,nt)+3}], v[{W+4*nt}:{W+4*nt+3}], v[{x}:{x+3}], v[{acc(mt,nt)}:{acc(mt,nt)+3}]')
                if i % 2 == 1 and pend: pend.pop(0)()
                if i % 3 == 0 and trs: a(trs.pop(0))
                i += 1
        while trs: a(trs.pop(0))
        while pend: pend.pop(0)()
    for st in range(12):
        pend = []
        if st + D < 12: pend += A_list(st + D)
        if st + DW < NS: pend += W_list(st + DW)
        vm.wait_for(a, lambda t: t == ('A', st) or t == ('W', st + 1))
        step_body(st, pend, True)
    for f in W_list(16): f()
    for mt in range(6): a(f'v_sub_f32 v{GR[mt]}, 1.0, v{GR[mt]}')
    for mt in range(6):
        for nt in range(4):
            for r in range(4): a(f'v_mul_f32 v{acc(mt,nt)+r}, v{acc(mt,nt)+r}, v{GR[mt]}')
    rt('hdone', 5)
    poll_bcast(a, 4, 's72', 32, 3, 'O', 5, 6, CNT_LDS + 20)
    (rt('oflag', 5) if ('astage' not in EXP and 'epi' not in EXP) else None)
    for st in range(12, 16):
        for f in A_list(st): f()
    for st in range(12, 17):
        pend = []
        if st == 12: pend_after = A_list(16)
        nxt = st + 1 < NS
        vm.wait_for(a, lambda t: t == ('A', st) or (nxt and t == ('W', st + 1)))
        step_body(st, [], nxt)
        if st == 12:
            for f in pend_after: f()
    (rt('g2loop', 5) if ('astage' not in EXP and 'epi' not in EXP) else None)
    a('s_barrier')
    for w in range(4):
        a(f's_cmp_eq_u32 {W_}, {w}')
        a(f's_cbranch_scc0 L_red{w}')
        for nt in range(4):
            if nt == w: continue
            si = w if w < nt else w - 1
            for mt in range(6):
                off = ((nt * 3 + si) * 6 + mt) * 1024
                if off < 65536: a(f'ds_write_b128 v4, v[{acc(mt,nt)}:{acc(mt,nt)+3}] offset:{off}')
                else:
                    a(f'v_add_u32 v6, 65536, v4')
                    a(f'ds_write_b128 v6, v[{acc(mt,nt)}:{acc(mt,nt)+3}] offset:{off-65536}')
        a('s_waitcnt lgkmcnt(0)')
        a('s_barrier')
        k = 0; order = []
        a(f'v_add_u32 v6, {w*3*6*1024}, v4')
        for si in range(3):
            for mt in range(6):
                a(f'ds_read_b128 v[{64+4*k}:{67+4*k}], v6 offset:{(si*6+mt)*1024}'); order.append(mt); k += 1
        for k, mt in enumerate(order):
            a(f's_waitcnt lgkmcnt({min(17-k, 15)})')
            for r in range(4):
                src_r = acc(mt, w) + r if k < 6 else 136 + 4*mt + r
                a(f'v_add_f32 v{136+4*mt+r}, v{src_r}, v{64+4*k+r}')
        a('s_branch L_redone')
        a('s_nop 7')
        a.label(f'L_red{w}')
    a.label('L_redone')
    a(f'''
    s_mul_i32 s64, s60, {96*1280}
    s_lshl_b32 s71, s61, 7
    s_add_u32 s64, s64, s71
    s_lshl_b32 s71, {W_}, 5
    s_add_u32 s64, s64, s71
    v_mul_u32_u24 v5, 1280, v2
    v_lshl_add_u32 v5, v3, 3, v5
    ''')
    for mt in range(6):
        A = 136 + 4*mt
        a(f'v_cvt_pk_bf16_f32 v{A}, v{A}, v{A+1}')
        a(f'v_cvt_pk_bf16_f32 v{A+1}, v{A+2}, v{A+3}')
        a(f'v_add_u32 v6, {20480*mt}, v5')
        a(f'buffer_store_dwordx2 v[{A}:{A+1}], v6, {rsrc(S_OUT)}, s64 offen')
    rt('end', 5)

def build(stamps=False):
    a = Asm(); a.name = 'k'
    C = Ctx()
    C.rt = RT(a, stamps, RT_LDS); C.rt.stride = 44
    prologue(a, C)
    C.rt('start', 8)
    gemm1(a, C)
    a(f'''
    s_cmp_ge_u32 s3, 4
    s_cbranch_scc1 L_G2ROLE
    s_setprio {0 if 'prio' in EXP else 2}
    ''')
    n0 = C.rt.n
    attention(a, C)
    if stamps: C.rt.dump()
    a('s_branch L_END')
    for hh, fn in getattr(C, 'fallbacks', []):
        a.label(f'L_fb{hh}')
        a('s_nop 7\ns_nop 7\ns_waitcnt lgkmcnt(0)')
        fn(hh, True)
        a('s_nop 7\ns_nop 7')
        a(f's_branch L_fbret{hh}')
    a.label('L_G2ROLE')
    if 'prioG' in EXP: a('s_setprio 2')
    names_att = list(C.rt.names)
    C.rt.n = n0; C.rt.names = C.rt.names[:n0]
    gemm2(a, C)
    if stamps:
        C.rt.dump()
        print(','.join(names_att), ','.join(C.rt.names), file=sys.stderr)
    a.label('L_END')
    a('s_endpgm')
    a.finalize()
    out = [f'''; fused persistent kernel v4
; @launch grid=(256,1,1) block=(512,1,1) lds={LDS_TOTAL}
.amdgcn_target "amdgcn-amd-amdhsa--gfx950"
.text
''']
    out.append(kernel_wrap(KN + '_kernel', a.text(), 256))
    out.append('.section .rodata,"a"\n.p2align 6\n')
    out.append(kd(KN + '_kernel', 256, 102))
    return ''.join(out)

if __name__ == '__main__':
    open(sys.argv[1], 'w').write(build(len(sys.argv) > 2))
```
